```python
import torch

def _softmax(x, axis=-1):
    return torch.softmax(x, dim=axis)
def _gelu(x):
    return torch.nn.functional.gelu(x, approximate="tanh")
def _silu(x):
    return torch.nn.functional.silu(x)
def _sigmoid(x):
    return torch.sigmoid(x)
def _layernorm(x, axis=-1, eps=1e-5):
    m = x.mean(dim=axis, keepdim=True)
    v = x.var(dim=axis, keepdim=True, unbiased=False)
    return (x - m) / torch.sqrt(v + eps)
def _scatter_add(tgt, idx, src, axis=0):
    return tgt.clone().index_add_(axis, idx, src)
def _segment_sum(src, seg, n):
    out = torch.zeros((n,) + src.shape[1:], dtype=src.dtype)
    return out.index_add_(0, seg, src)
def _pad(x, pw):
    flat = tuple(v for pair in reversed(pw) for v in pair)
    return torch.nn.functional.pad(x, flat)

kernel_name = 'gated_mix__linear_attn_block__dense_activation_squared_relu__prompt'

def setup_inputs():

    _w = (lambda a: (lambda t: t.to(torch.bfloat16) if t.is_floating_point() else t)(torch.as_tensor(a)))
    def _A_setup():
        B, S, D = 1, 2048, 512
        return {
            "x": _w((lambda *s: torch.randn(*s, dtype=torch.bfloat16) * 0.05)(B, S, D)),
            "wqkv": _w((lambda *s: torch.randn(*s, dtype=torch.bfloat16) * 0.8)(D, 3 * D)),
            "wo": _w((lambda *s: torch.randn(*s, dtype=torch.bfloat16) * 0.2)(D, D)),
        }
    _A_in = _A_setup()

    def _B_setup():
        B, S, D, F = 1, 2048, 512, 1792
        return {
            "x": _w((lambda *s: torch.randn(*s, dtype=torch.bfloat16) * 0.05)(B, S, D)),
            "w1": _w((lambda *s: torch.randn(*s, dtype=torch.bfloat16) * 0.1)(D, F)),
            "b1": _w((lambda *s: torch.randn(*s, dtype=torch.bfloat16) * 0.05)(F)),
            "w2": _w((lambda *s: torch.randn(*s, dtype=torch.bfloat16) * 0.05)(F, D)),
            "b2": _w((lambda *s: torch.randn(*s, dtype=torch.bfloat16) * 0.05)(D)),
        }
    _B_in = _B_setup()

    return {
        "A_x": _A_in["x"],
        "A_wqkv": _A_in["wqkv"],
        "A_wo": _A_in["wo"],
        "B_x": _B_in["x"],
        "B_w1": _B_in["w1"],
        "B_b1": _B_in["b1"],
        "B_w2": _B_in["w2"],
        "B_b2": _B_in["b2"],
        "gate_w": _w((lambda *s: torch.randn(*s, dtype=torch.bfloat16) * 0.05)(512) * 16.0),
    }

def reference(A_x, A_wqkv, A_wo, B_x, B_w1, B_b1, B_w2, B_b2, gate_w):
    def _A_ref(x, wqkv, wo):
        B, S, D = x.shape
        H = 32; Dh = D // H
        qkv = (lambda x, *d: x.permute(*d))((x @ wqkv).reshape(B, S, 3, H, Dh), 2, 0, 3, 1, 4)
        q, k, v = qkv[0], qkv[1], qkv[2]
        phi = lambda t: torch.where(t > 0, t + 1, torch.exp(t)) + 1e-6
        pq, pk = phi(q), phi(k)
        kv = torch.einsum("bhsd,bhse->bhde", pk, v)
        z = torch.einsum("bhsd->bhd", pk)
        num = torch.einsum("bhqd,bhde->bhqe", pq, kv)
        den = torch.einsum("bhqd,bhd->bhq", pq, z)[..., None] + 1e-6
        o = num / den
        return (lambda x, *d: x.permute(*d))(o, 0, 2, 1, 3).reshape(B, S, D) @ wo

    def _B_ref(x, w1, b1, w2, b2):
        h = torch.einsum("bsd,df->bsf", x, w1) + b1
        zero = torch.zeros_like(h)
        r = torch.where(h > zero, h, zero)
        h = r * r
        out = torch.einsum("bsf,fd->bsd", h, w2) + b2
        return out

    x = A_x
    g = _sigmoid((x * gate_w).sum(-1, keepdims=True))
    a = _A_ref(x, A_wqkv, A_wo)
    b = _B_ref(x, B_w1, B_b1, B_w2, B_b2)
    return g * a + (1 - g) * b
```

```python
import re

TRANS = ("v_exp_f32", "v_log_f32", "v_rcp_f32", "v_rsq_f32", "v_sqrt_f32", "v_sin_f32", "v_cos_f32")
REG_RE = re.compile(r"^(-|abs\()?([vas])(\d+|\[(\d+):(\d+)\])\)?$")


def regs_of(tok):
    tok = tok.strip()
    if tok in ("vcc", "exec", "m0", "scc"):
        return {tok}
    if tok in ("exec_lo", "exec_hi"):
        return {"exec"}
    if tok in ("vcc_lo", "vcc_hi"):
        return {"vcc"}
    m = REG_RE.match(tok)
    if not m:
        return set()
    k = m.group(2)
    if m.group(4) is not None:
        return {(k, i) for i in range(int(m.group(4)), int(m.group(5)) + 1)}
    return {(k, int(m.group(3)))}


class Ins:
    __slots__ = ("text", "op", "kind", "rd", "wr", "tag", "ops", "srcC", "dpp", "pseudo", "arg", "ab")

    def __init__(self, text, tag=None):
        self.text = text
        self.tag = tag
        self.pseudo = None
        self.arg = None
        self.srcC = set()
        self.ab = set()
        self.dpp = False
        t = text.strip()
        if t.endswith(":") or t.startswith(";") or t.startswith("."):
            self.op = "label" if t.endswith(":") else "comment"
            self.kind = self.op
            self.rd = set(); self.wr = set(); self.ops = []
            return
        parts = t.split(None, 1)
        op = parts[0]
        self.op = op
        rest = parts[1] if len(parts) > 1 else ""
        rest = rest.split(";")[0]
        ops = []
        cur = ""
        depth = 0
        for ch in rest:
            if ch in "[(":
                depth += 1
            if ch in "])":
                depth -= 1
            if ch == "," and depth == 0:
                ops.append(cur.strip()); cur = ""
            else:
                cur += ch
        if cur.strip():
            ops.append(cur.strip())
        mods = ""
        if ops:
            last = ops[-1].split(None, 1)
            ops[-1] = last[0]
            mods = last[1] if len(last) > 1 else ""
        self.ops = ops
        R = [regs_of(o) for o in ops]
        U = lambda l: set().union(*l) if l else set()
        base = op.replace("_e32", "").replace("_e64", "").replace("_dpp", "")
        if op.startswith("v_mfma"):
            self.kind = "mfma"
            self.wr = R[0]; self.rd = U(R[1:]); self.srcC = R[3]; self.ab = R[1] | R[2]
        elif op.startswith("v_"):
            self.kind = "trans" if base in TRANS else "valu"
            self.wr = set(R[0]); self.rd = U(R[1:])
            if base.startswith(("v_fmac", "v_writelane")):
                self.rd |= R[0]
            if base.startswith(("v_swap", "v_permlane")):
                self.wr = R[0] | R[1]; self.rd = R[0] | R[1]
            if "row_" in mods or "quad_perm" in mods or op.endswith("_dpp"):
                self.dpp = True
                self.rd |= R[0]
            if base.startswith("v_cndmask") and len(ops) == 3:
                self.rd |= {"vcc"}
        elif op.startswith("ds_read") or op.startswith("ds_bpermute") or op.startswith("ds_swizzle"):
            self.kind = "ds"
            self.wr = R[0]; self.rd = U(R[1:])
        elif op.startswith("ds_"):
            self.kind = "ds"
            self.wr = set(); self.rd = U(R)
        elif op.startswith(("buffer_load", "global_load")):
            self.kind = "vmem"
            if " lds" in (" " + mods) or "_lds_" in op:
                self.wr = set(); self.rd = U(R) | {"m0"}
            else:
                self.wr = R[0]; self.rd = U(R[1:])
        elif op.startswith(("buffer_store", "global_store", "buffer_atomic", "global_atomic")):
            self.kind = "vmem"
            self.wr = set(); self.rd = U(R)
        elif op.startswith(("s_load", "s_atomic", "s_memtime", "s_memrealtime")):
            self.kind = "smem"
            self.wr = R[0]; self.rd = U(R[1:]) | (R[0] if op.startswith("s_atomic") else set())
        elif op.startswith("s_"):
            self.kind = "salu"
            if op.startswith(("s_cmp", "s_waitcnt", "s_barrier", "s_branch", "s_cbranch", "s_nop", "s_sleep", "s_endpgm", "s_setprio", "s_bitcmp")):
                self.wr = set(); self.rd = U(R)
            else:
                self.wr = R[0]; self.rd = U(R[1:])
        else:
            raise ValueError("unknown op " + text)


def pseudo(kind, arg):
    i = Ins("; " + kind)
    i.pseudo = kind
    i.arg = arg
    return i


def isv(r):
    return isinstance(r, tuple) and r[0] in "va"


def iss(r):
    return r == "vcc" or (isinstance(r, tuple) and r[0] == "s")


def need_states(p, c):
    n = 0
    pv = p.kind in ("valu", "trans")
    cv = c.kind in ("valu", "trans")
    if pv:
        wv = {r for r in p.wr if isv(r)}
        ws = {r for r in p.wr if iss(r)}
        if c.kind == "mfma" and wv & c.rd:
            n = max(n, 2)
        if cv and c.dpp and wv & c.rd:
            n = max(n, 2)
        if cv and c.op.startswith("v_permlane") and wv & c.rd:
            n = max(n, 2)
        if cv and c.op.startswith(("v_readlane", "v_readfirstlane")) and wv & c.rd:
            n = max(n, 1)
        if p.kind == "trans" and c.kind in ("valu", "mfma", "ds", "vmem") and wv & c.rd:
            n = max(n, 1)
        if ws:
            if c.kind in ("vmem", "smem") and ws & c.rd:
                n = max(n, 5)
            if cv and ws & c.rd:
                n = max(n, 4 if c.op.startswith(("v_readlane", "v_writelane")) else 2)
            if c.kind == "salu" and ws & c.rd:
                n = max(n, 2)
    if p.kind == "mfma":
        if c.kind == "mfma":
            if p.wr & c.ab:
                n = max(n, 12)
            if p.wr & c.srcC:
                n = max(n, 0 if p.wr == c.srcC else 10)
            elif p.wr & c.wr:
                n = max(n, 12)
        elif c.kind in ("valu", "trans", "ds", "vmem"):
            if p.wr & (c.rd | c.wr):
                n = max(n, 12)
            if p.srcC & c.wr:
                n = max(n, 7)
    if p.kind == "salu" and "m0" in p.wr and c.kind == "vmem" and "m0" in c.rd:
        n = max(n, 1)
    if p.kind == "vmem" and p.op.startswith(("buffer_store", "global_store")) and ("x4" in p.op or "x3" in p.op):
        if {r for r in p.rd if isv(r)} & c.wr:
            n = max(n, 2)
    return n


class Prog:
    def __init__(self):
        self.l = []

    def __call__(self, text, tag=None):
        for line in text.strip().split("\n"):
            line = line.strip()
            if line:
                self.l.append(Ins(line, tag))
        return self

    def add(self, items):
        self.l.extend(items)

    def waitvm(self, *tags):
        self.l.append(pseudo("waitvm", tags))

    def waitlg(self, *tags):
        self.l.append(pseudo("waitlg", tags))


def resolve(l, vm_init=None):
    out = []
    vm = list(vm_init or [])
    lg = []
    vm_done = 0
    lg_done = 0
    for ins in l:
        if ins.pseudo in ("waitvm", "waitlg"):
            q = vm if ins.pseudo == "waitvm" else lg
            done = vm_done if ins.pseudo == "waitvm" else lg_done
            last = -1
            for t in ins.arg:
                idx = [i for i, x in enumerate(q) if x == t]
                if not idx:
                    raise ValueError("wait on tag never issued: %r" % (t,))
                last = max(last, idx[-1])
            if last + 1 <= done:
                continue
            n = len(q) - 1 - last
            mx = 63 if ins.pseudo == "waitvm" else 15
            n = min(n, mx)
            if ins.pseudo == "waitvm":
                vm_done = len(q) - n
                out.append(Ins("s_waitcnt vmcnt(%d)" % n))
            else:
                lg_done = len(q) - n
                out.append(Ins("s_waitcnt lgkmcnt(%d)" % n))
            continue
        if ins.kind == "vmem":
            vm.append(ins.tag)
        if ins.kind == "ds":
            lg.append(ins.tag)
        if ins.op == "s_waitcnt":
            m = re.search(r"vmcnt\((\d+)\)", ins.text)
            if m and ins.tag != "cond":
                vm_done = max(vm_done, len(vm) - int(m.group(1)))
            m = re.search(r"lgkmcnt\((\d+)\)", ins.text)
            if m and ins.tag != "cond":
                lg_done = max(lg_done, len(lg) - int(m.group(1)))
        out.append(ins)
    res = []
    for ins in out:
        if res and ins.op == "s_waitcnt" and res[-1].op == "s_waitcnt" and ins.tag != "cond" and res[-1].tag != "cond":
            d = {}
            for t in (res[-1].text, ins.text):
                for k, v in re.findall(r"(vmcnt|lgkmcnt)\((\d+)\)", t):
                    d[k] = min(d.get(k, 99), int(v))
            res[-1] = Ins("s_waitcnt " + " ".join("%s(%d)" % (k, d[k]) for k in sorted(d, reverse=True)))
        else:
            res.append(ins)
    return res


def pad_hazards(l):
    out = []
    for ins in l:
        if ins.kind in ("label", "comment"):
            out.append(ins)
            continue
        need = 0
        dist = 0
        for p in reversed(out):
            if p.kind in ("label", "comment"):
                continue
            if dist >= 13:
                break
            n = need_states(p, ins)
            if n > dist:
                need = max(need, n - dist)
            if p.tag == "cond" and ins.tag != "cond":
                continue
            if p.op == "s_nop":
                dist += int(p.ops[0]) + 1
            else:
                dist += 1
        if need > 0:
            out.append(Ins("s_nop %d" % (need - 1), ins.tag if ins.tag == "cond" else None))
        out.append(ins)
    return out


def render(l):
    s = []
    for ins in l:
        if ins.kind == "label":
            s.append(ins.text)
        else:
            s.append("    " + ins.text)
    return "\n".join(s)
```

```python
import sys
from asmdsl import *

NAME = "gated_mix__linear_attn_block__dense_activation_squared_relu__prompt"

CFG = dict(stamps=0, rot=0, r2_early=9, ahead=10, pubdelay=2)
for a in sys.argv[2:]:
    k, v = a.split("=")
    CFG[k] = int(v)

A_GRP = 144 * 16384
WS_KVP = 0x900000
WS_Z = 0x980000
WS_G = 0x990000
WS_CNT = 0x9A0000
WS_DBG = 0xA00000
WS_SIZE = 0x1000000
UNIT = 16384
MISC = 9 * UNIT

SRD_X, SRD_QKV, SRD_W1, SRD_WO, SRD_W2, SRD_WS, SRD_OUT, SRD_GATE = [("s[%d:%d]" % (b, b + 3)) for b in range(4, 36, 4)]
WSP = "s[24:25]"
sW, sRW, sCW, sRB, sCG, sP, sR2, sCT = ["s%d" % i for i in range(42, 50)]
sXs, sWs, sRot, sTa, sTb, sM0w, sBH, sBO = ["s%d" % i for i in range(50, 58)]
sCntSig, sCntKV, sCntGsig, sCntH, sCntG, sCntGq = ["s%d" % i for i in range(58, 64)]
STMP = 64
sPollH, sPoll, sTO, sTc = "s96", "s97", "s98", "s99"
sUA, sUB = "s3", "s2"

vL = "v1"
vXs = ["v%d" % i for i in range(2, 6)]
vW1 = ["v%d" % i for i in range(6, 10)]
vWp2 = ["v%d" % i for i in range(10, 14)]
vXr = [["v%d" % (14 + R * 4 + t) for t in range(4)] for R in range(2)]
vWr = "v22"
vP2r = ["v23", "v24", "v25", "v26"]
vW2s = ["v27", "v28"]
vW2r = ["v29", "v30", "v31"]
vSt = ["v32", "v33"]
vL16, vS4, vA, vGoff = "v34", "v35", "v36", "v37"
vGv = 38
FR = 40
ACC = 64
ACC2 = 128
BIAS = 176
TMP = 208
vStamp = "v255"
vMaskHi = "v254"


def vr(b, n=1):
    return "v%d" % b if n == 1 else "v[%d:%d]" % (b, b + n - 1)


def ar(b, n=1):
    return "a%d" % b if n == 1 else "a[%d:%d]" % (b, b + n - 1)


class Gen(Prog):
    def __init__(self, pfx):
        super().__init__()
        self.q = []
        self.ev = set()
        self.pre_done = False
        self.pfx = pfx
        self.nl = 0

    def lab(self, n):
        self.nl += 1
        return "L%s_%s%d" % (self.pfx, n, self.nl)

    def push(self, pre, dma, tag, event=None):
        self.q.append((pre, dma, tag, event))

    def fill(self, n=1):
        for _ in range(n):
            if not self.q:
                return
            pre, dma, tag, event = self.q[0]
            if event is not None and event not in self.ev:
                return
            self.q.pop(0)
            if not self.pre_done:
                for x in pre:
                    self(x)
            self(dma, tag)
            self.pre_done = False
            if self.q:
                for x in self.q[0][0]:
                    self(x)
                self.pre_done = True

    def flush_until(self, tag):
        while any(x[2] == tag for x in self.q):
            n = len(self.q)
            self.fill(1)
            if len(self.q) == n:
                raise ValueError("queue blocked on event %r while flushing to %r" % (self.q[0][3], tag))

    def need(self, *tags):
        for t in tags:
            self.flush_until(t)
        self.waitvm(*tags)

    def barrier(self, name):
        self("s_barrier")
        self.ev.add(name)

    def sprinkle(self, lines, every):
        for i, x in enumerate(lines):
            if isinstance(x, tuple):
                self(x[0], x[1])
            elif callable(x):
                x()
            else:
                self(x)
            if (i + 1) % every == 0:
                self.fill(1)

    def stamp(self, i):
        if CFG["stamps"]:
            self("s_memrealtime s[100:101]")
            self("s_waitcnt lgkmcnt(0)")
            self("v_writelane_b32 %s, s100, %d" % (vStamp, i))

    def poll_issue(self, reg, off):
        self("s_mov_b32 %s, 0" % reg)
        self("s_atomic_add %s, %s, %s glc" % (reg, WSP, off))

    def gate(self, reg, off, shift, target, pending=True):
        top, done = self.lab("g"), self.lab("gd")
        if pending:
            self("s_waitcnt lgkmcnt(0)")
        self("%s:" % top)
        self("s_bfe_u32 %s, %s, 0x%x" % (sTc, reg, (8 << 16) | shift))
        self("s_cmp_ge_u32 %s, %d" % (sTc, target))
        self("s_cbranch_scc1 %s" % done)
        self("s_cmp_eq_u32 %s, 0" % sTO, "cond")
        self("s_cbranch_scc1 %s" % done, "cond")
        self("s_sub_u32 %s, %s, 1" % (sTO, sTO), "cond")
        self("s_mov_b32 %s, 0" % reg, "cond")
        self("s_atomic_add %s, %s, %s glc" % (reg, WSP, off), "cond")
        self("s_waitcnt lgkmcnt(0)", "cond")
        self("s_branch %s" % top, "cond")
        self("%s:" % done)

    def init_issue(self):
        self("s_load_dword %s, s[40:41], 0x0 glc" % sPoll)

    def init_gate(self):
        top, done = self.lab("i"), self.lab("id")
        self("s_waitcnt lgkmcnt(0)")
        self("%s:" % top)
        self("s_cmp_lg_u32 %s, 0" % sPoll)
        self("s_cbranch_scc1 %s" % done)
        self("s_cmp_eq_u32 %s, 0" % sTO, "cond")
        self("s_cbranch_scc1 %s" % done, "cond")
        self("s_sub_u32 %s, %s, 1" % (sTO, sTO), "cond")
        self("s_sleep 2", "cond")
        self("s_load_dword %s, s[40:41], 0x0 glc" % sPoll, "cond")
        self("s_waitcnt lgkmcnt(0)", "cond")
        self("s_branch %s" % top, "cond")
        self("%s:" % done)

    def signal(self, off, val):
        self("s_atomic_add %s, %s, %s" % ("s0" if val == 1 else "s1", WSP, off))


def bias_lines(dst, sbase):
    out = []
    for hh in range(2):
        if hh == 0:
            out.append("s_mov_b32 exec_hi, 0")
        else:
            out.append("s_mov_b32 exec_hi, -1")
            out.append("s_mov_b32 exec_lo, 0")
        for m in range(4):
            for e in range(2):
                s = "s%d" % (sbase + 4 * m + 2 * hh + e)
                out.append("v_lshlrev_b32_e64 v%d, 16, %s" % (dst + 4 * m + 2 * e, s))
                out.append("v_and_b32 v%d, %s, %s" % (dst + 4 * m + 2 * e + 1, s, vMaskHi))
    out.append("s_mov_b64 exec, -1")
    return out


def prologue():
    P = Prog()
    P("s_cmp_ge_u32 s2, 256")
    P("s_cbranch_scc1 L_end")
    for srd, off in ((4, 0), (8, 8), (12, 32), (32, 64), (24, 88), (36, 40), (40, 80), (16, 16), (20, 48), (28, 72), (38, 56)):
        P("s_load_dwordx2 s[%d:%d], s[0:1], %d" % (srd, srd + 1, off))
    P("v_lshrrev_b32 v2, 6, v0")
    P("v_and_b32 %s, 63, v0" % vL)
    P("v_readfirstlane_b32 %s, v2" % sW)
    for srd, size in ((4, 2097152), (8, 1572864), (12, 1835008), (16, 524288), (20, 1835008), (24, WS_SIZE), (28, 2097152), (32, 1024)):
        P("s_mov_b32 s%d, 0x%x" % (srd + 2, size))
        P("s_mov_b32 s%d, 0x20000" % (srd + 3))
    P("s_and_b32 %s, s2, 7" % sTa)
    P("s_lshr_b32 %s, s2, 3" % sTb)
    P("s_and_b32 %s, %s, 1" % (sRB, sTa))
    P("s_lshl_b32 %s, %s, 3" % (sRB, sRB))
    P("s_and_b32 %s, %s, 7" % (sTc, sTb))
    P("s_add_u32 %s, %s, %s" % (sRB, sRB, sTc))
    P("s_lshr_b32 %s, %s, 1" % (sCG, sTa))
    P("s_lshl_b32 %s, %s, 2" % (sCG, sCG))
    P("s_lshr_b32 %s, %s, 3" % (sTc, sTb))
    P("s_add_u32 %s, %s, %s" % (sCG, sCG, sTc))
    P("s_lshr_b32 %s, %s, 1" % (sP, sCG))
    P("s_lshl_b32 %s, %s, 2" % (sR2, sTa))
    P("s_and_b32 %s, %s, 3" % (sTc, sTb))
    P("s_add_u32 %s, %s, %s" % (sR2, sR2, sTc))
    P("s_lshr_b32 %s, %s, 2" % (sCT, sTb))
    if CFG["rot"] == 0:
        P("s_mov_b32 %s, 0" % sRot)
    elif CFG["rot"] == 1:
        P("s_mov_b32 %s, %s" % (sRot, sTa))
    else:
        P("s_lshl_b32 %s, %s, 1" % (sRot, sCG))
        P("s_add_u32 %s, %s, %s" % (sRot, sRot, sRB))
    P("s_lshr_b32 %s, %s, 1" % (sRW, sW))
    P("s_and_b32 %s, %s, 1" % (sCW, sW))
    P("s_lshl_b32 %s, %s, 12" % (sM0w, sW))
    P("s_mov_b32 %s, 0x8000" % sTO)
    P("v_lshlrev_b32 %s, 4, %s" % (vL16, vL))
    t0, t1, t2, t3 = "v240", "v241", "v242", "v243"
    P("v_lshrrev_b32 %s, 3, %s" % (t0, vL))
    P("v_lshrrev_b32 %s, 4, %s" % (t1, vL))
    P("v_and_b32 %s, 7, %s" % (t2, vL))
    P("v_xor_b32 %s, %s, %s" % (t2, t2, t1))
    P("v_lshlrev_b32 %s, 4, %s" % (t2, t2))
    P("s_lshl_b32 %s, %s, 15" % (sTc, sW))
    P("v_lshl_add_u32 %s, %s, 10, %s" % (t2, t0, t2))
    P("v_add_u32 %s, %s, %s" % (vXs[0], sTc, t2))
    P("v_xor_b32 %s, 64, %s" % (vXs[1], vXs[0]))
    P("v_add_u32 %s, 0x2000, %s" % (vXs[1], vXs[1]))
    P("v_add_u32 %s, 0x4000, %s" % (vXs[2], vXs[0]))
    P("v_add_u32 %s, 0x4000, %s" % (vXs[3], vXs[1]))
    P("s_bitcmp1_b32 %s, 0" % sCG)
    P("s_cbranch_scc1 L_Q")
    return P


def chunk_pre(c, pitch, with_x):
    pre = ["s_add_u32 %s, %s, %d" % (sTa, sRot, c), "s_and_b32 %s, %s, 7" % (sTa, sTa)]
    if with_x:
        pre += ["s_lshl_b32 %s, %s, 10" % (sXs, sRB), "s_add_u32 %s, %s, %s" % (sXs, sXs, sTa), "s_lshl_b32 %s, %s, 7" % (sXs, sXs)]
    pre += ["s_mul_i32 %s, %s, %d" % (sWs, sTa, 64 * pitch)]
    return pre


def build(isQ):
    G = Gen("Q" if isQ else "K")
    t0, t1, t2, t3, t4 = "v240", "v241", "v242", "v243", "v244"
    srdA, pitchA = (SRD_W1, 3584) if isQ else (SRD_QKV, 3072)
    srdB, pitchB = (SRD_QKV, 3072) if isQ else (SRD_W1, 3584)
    if isQ:
        G("L_Q:")
    if CFG["stamps"]:
        G("v_mov_b32 %s, 0" % vStamp)
    G("v_bfe_u32 %s, %s, 2, 2" % (t2, vL))
    G("s_lshl_b32 %s, %s, 4" % (sTc, sW))
    G("v_add_u32 %s, %s, %s" % (t2, sTc, t2))
    G("v_and_b32 %s, 3, %s" % (t3, vL))
    G("v_lshlrev_b32 %s, 4, %s" % (t3, t3))
    G("s_and_b32 %s, %s, 1" % (sTb, sP))
    if isQ:
        G("s_mul_i32 %s, %s, 448" % (sTa, sP))
        G("s_mul_i32 %s, %s, 192" % (sTc, sTb))
        G("s_add_u32 %s, %s, %s" % (sTa, sTa, sTc))
        G("v_lshl_add_u32 %s, %s, 6, %s" % (t4, t1, t3))
    else:
        G("s_lshl_b32 %s, %s, 7" % (sTa, sP))
        G("s_add_u32 %s, %s, 1024" % (sTa, sTa))
        G("v_and_b32 %s, 1, %s" % (t4, t1))
        G("v_lshl_add_u32 %s, %s, 6, %s" % (t4, t4, t3))
        G("v_lshrrev_b32 %s, 5, %s" % (t0, vL))
        G("v_lshl_add_u32 %s, %s, 10, %s" % (t4, t0, t4))
    G("v_mul_u32_u24 %s, %d, %s" % (vW1[0], pitchA, t2))
    G("v_add3_u32 %s, %s, %s, %s" % (vW1[0], vW1[0], t4, sTa))
    for i in range(1, 4):
        G("v_add_u32 %s, %d, %s" % (vW1[i], 4 * i * pitchA, vW1[0]))
    if isQ:
        G("s_lshl_b32 %s, %s, 6" % (sTc, sCW))
        G("s_add_u32 %s, %s, %s" % (sUA, sTa, sTc))
        G("s_add_u32 %s, %s, 128" % (sBH, sUA))
    else:
        G("s_mul_i32 %s, %s, 448" % (sTa, sP))
        G("s_xor_b32 %s, %s, 1" % (sTc, sTb))
        G("s_lshl_b32 %s, %s, 8" % (sTc, sTc))
        G("s_add_u32 %s, %s, %s" % (sTa, sTa, sTc))
        G("s_lshl_b32 %s, %s, 7" % (sTc, sCW))
        G("s_add_u32 %s, %s, %s" % (sUA, sTa, sTc))
        G("s_add_u32 %s, %s, 64" % (sBH, sTa))
        G("s_and_b32 %s, %s, 0xffffff80" % (sBO, sTa))
    G("s_lshl_b32 %s, %s, 4" % (sTc, sRB))
    G("s_add_u32 %s, %s, %s" % (sTc, sTc, sCG))
    G("s_lshl_b32 %s, %s, 2" % (sTc, sTc))
    G("s_add_u32 %s, %s, %s" % (sTc, sTc, sW))
    G("s_lshl_b32 %s, %s, 11" % (sPoll, sTc))
    G("s_lshl_b32 %s, %s, 3" % (sPollH, sTc))
    G("s_waitcnt lgkmcnt(0)")
    G("s_mov_b32 s0, 1")
    G("s_mov_b32 s1, 0x%x" % (0x10000 if isQ else 0x100))
    if not isQ:
        G("s_or_b32 %s, s2, %s" % (sTc, sW))
        G("s_cmp_lg_u32 %s, 0" % sTc)
        G("s_cbranch_scc1 LK_noinit")
        G("v_lshlrev_b32 v245, 8, %s" % vL, "cond")
        G("v_mov_b32 v246, 0", "cond")
        G("s_mov_b32 %s, 0x%x" % (sTc, WS_CNT), "cond")
        G.l.append(Ins("buffer_store_dword v246, v245, %s, %s offen sc1" % (SRD_WS, sTc), "cond"))
        G("s_add_u32 %s, %s, 0x4000" % (sTc, sTc), "cond")
        G.l.append(Ins("buffer_store_dword v246, v245, %s, %s offen sc1" % (SRD_WS, sTc), "cond"))
        G("s_add_u32 %s, %s, 0x4000" % (sTc, sTc), "cond")
        G.l.append(Ins("buffer_store_dword v246, v245, %s, %s offen sc1" % (SRD_WS, sTc), "cond"))
        G("LK_noinit:")
    GX0, GX1, GW = TMP, TMP + 4, TMP + 8
    G("buffer_load_dwordx4 %s, %s, %s, 0 offen" % (vr(GW, 4), vL16, SRD_GATE), "g")
    G("buffer_load_dwordx4 %s, %s, %s, %s offen" % (vr(GX0, 4), vL16, SRD_X, sPoll), "g")
    G("buffer_load_dwordx4 %s, %s, %s, %s offen offset:1024" % (vr(GX1, 4), vL16, SRD_X, sPoll), "g")
    G("s_load_dwordx16 s[%d:%d], s[36:37], %s" % (STMP, STMP + 15, sUA))
    G("s_load_dwordx16 s[%d:%d], s[36:37], %s" % (STMP + 16, STMP + 31, sBH))

    for c in range(8):
        ev = None if c < 2 else "B%d" % (c - 2)
        for i in range(4):
            pre = chunk_pre(c, pitchA, True) if i == 0 else []
            G.push(pre + ["s_add_u32 m0, %s, %d" % (sM0w, (c % 4) * UNIT + i * 1024)],
                   "buffer_load_dwordx4 %s, %s, %s offen lds" % (vXs[i], SRD_X, sXs), ("c1", c), ev)
            G.push(["s_add_u32 m0, %s, %d" % (sM0w, (4 + c % 4) * UNIT + i * 1024)],
                   "buffer_load_dwordx4 %s, %s, %s offen lds" % (vW1[i], srdA, sWs), ("c1", c), ev)
    G.fill(8)
    if not isQ:
        G("s_or_b32 %s, s2, %s" % (sTc, sW))
        G("s_cmp_lg_u32 %s, 0" % sTc)
        G("s_cbranch_scc1 LK_noinit2")
        G("s_waitcnt vmcnt(11)", "cond")
        G("s_atomic_add s0, s[40:41], 0x0", "cond")
        G("LK_noinit2:")
    G.stamp(0)
    G("s_lshl_b32 %s, %s, 9" % (sUB, sBH))
    G("s_lshl_b32 %s, %s, 9" % (sUA, sUA))
    h, s32 = "v245", "v246"
    G("v_lshrrev_b32 %s, 5, %s" % (h, vL))
    G("v_and_b32 %s, 31, %s" % (s32, vL))
    G("v_lshlrev_b32 %s, 2, %s" % (vS4, s32))
    G("v_mov_b32 %s, 0xffff0000" % vMaskHi)
    if isQ:
        G("v_bfe_u32 %s, %s, 2, 3" % (t0, vL))
        G("s_lshl_b32 %s, %s, 4" % (sTc, sW))
        G("v_add_u32 %s, %s, %s" % (t0, sTc, t0))
        G("v_mul_u32_u24 %s, %d, %s" % (vWp2[0], pitchB, t0))
        G("v_lshl_add_u32 %s, %s, 6, %s" % (t4, h, t3))
        G("s_lshl_b32 %s, %s, 7" % (sTc, sP))
        G("v_add3_u32 %s, %s, %s, %s" % (vWp2[0], vWp2[0], t4, sTc))
        G("v_add_u32 %s, %d, %s" % (vWp2[1], 8 * pitchB, vWp2[0]))
    else:
        G("v_mul_u32_u24 %s, %d, %s" % (vWp2[0], pitchB, t2))
        G("v_lshl_add_u32 %s, %s, 6, %s" % (t4, t1, t3))
        G("v_add3_u32 %s, %s, %s, %s" % (vWp2[0], vWp2[0], t4, sBO))
        for i in range(1, 4):
            G("v_add_u32 %s, %d, %s" % (vWp2[i], 4 * i * pitchB, vWp2[0]))
    G("v_bfe_u32 %s, %s, 1, 3" % (t0, s32))
    G("v_xor_b32 %s, %s, %s" % (t0, t0, h))
    G("v_lshlrev_b32 %s, 4, %s" % (t0, t0))
    G("v_lshl_add_u32 %s, %s, 7, %s" % (t0, s32, t0))
    G("v_add_u32 %s, %s, %s" % (vXr[0][0], sM0w, t0))
    G("v_xor_b32 %s, 0x1000, %s" % (vXr[1][0], vXr[0][0]))
    for R in range(2):
        for t in range(1, 4):
            G("v_xor_b32 %s, %d, %s" % (vXr[R][t], t << 5, vXr[R][0]))
    G("v_bfe_u32 %s, %s, 2, 2" % (t0, vL))
    G("v_lshlrev_b32 %s, 6, %s" % (t4, t0))
    G("v_and_b32 %s, 1, %s" % (t0, t1))
    G("v_lshl_add_u32 %s, %s, 5, %s" % (t4, t0, t4))
    G("v_lshrrev_b32 %s, 1, %s" % (t0, t3))
    G("v_add_u32 %s, %s, %s" % (t4, t4, t0))
    G("v_lshl_add_u32 %s, %s, 11, %s" % (t0, h, t4))
    G("s_lshl_b32 %s, %s, 8" % (sTc, sCW))
    G("s_add_u32 %s, %s, 0x10000" % (sTc, sTc))
    G("v_add_u32 %s, %s, %s" % (vWr, sTc, t0))
    if isQ:
        G("v_lshl_add_u32 %s, %s, 10, %s" % (vP2r[0], h, t4))
        G("s_lshl_b32 %s, %s, 9" % (sTc, sCW))
        G("v_add_u32 %s, %s, %s" % (vP2r[0], sTc, vP2r[0]))
        G("v_add_u32 %s, 0x10000, %s" % (vP2r[1], vP2r[0]))
    else:
        G("s_lshl_b32 %s, %s, 1" % (sTc, sCW))
        G("s_add_u32 %s, %s, %s" % (sTc, sTc, sTb))
        G("s_lshl_b32 %s, %s, 8" % (sTc, sTc))
        G("v_add_u32 %s, %s, %s" % (vP2r[0], sTc, t0))
        G("v_add_u32 %s, 0x10000, %s" % (vP2r[1], vP2r[0]))
        G("s_add_u32 %s, %s, 1" % (sTc, sTb))
        G("s_lshl_b32 %s, %s, 8" % (sTc, sTc))
        G("v_add_u32 %s, %s, %s" % (vP2r[2], sTc, t0))
        G("v_add_u32 %s, 0x10000, %s" % (vP2r[3], vP2r[2]))
    G("v_lshl_add_u32 %s, %s, 8, %s" % (t0, h, t4))
    G("v_add_u32 %s, %s, %s" % (vW2r[0], sM0w, t0))
    G("v_add_u32 %s, 0x10000, %s" % (vW2r[1], vW2r[0]))
    G("v_add_u32 %s, 0x20000, %s" % (vW2r[2], vW2r[0]))
    G("v_bfe_u32 %s, %s, 2, 3" % (t0, vL))
    G("v_lshl_add_u32 %s, %s, 6, %s" % (t4, h, t3))
    G("v_lshl_add_u32 %s, %s, 10, %s" % (t0, t0, t4))
    G("s_lshl_b32 %s, %s, 7" % (sTc, sCT))
    G("v_add_u32 %s, %s, %s" % (vW2s[0], sTc, t0))
    G("v_add_u32 %s, 0x2000, %s" % (vW2s[1], vW2s[0]))
    G("s_lshr_b32 %s, %s, 2" % (sTc, sRB))
    G("s_mul_i32 %s, %s, %d" % (sTc, sTc, A_GRP))
    G("s_and_b32 %s, %s, 3" % (sBH, sRB))
    G("s_lshl_b32 %s, %s, 2" % (sBH, sBH))
    G("s_add_u32 %s, %s, %s" % (sBH, sBH, sW))
    G("s_lshl_b32 %s, %s, 10" % (sBH, sBH))
    G("s_add_u32 %s, %s, %s" % (sTc, sTc, sBH))
    G("v_add_u32 %s, %s, %s" % (vSt[0], sTc, vL16))
    G("v_xor_b32 %s, 0x400, %s" % (vSt[1], vSt[0]))
    G("s_lshr_b32 %s, %s, 3" % (sTc, sR2))
    G("s_mul_i32 %s, %s, %d" % (sTc, sTc, A_GRP))
    G("s_and_b32 %s, %s, 7" % (sBH, sR2))
    G("s_lshl_b32 %s, %s, 11" % (sBH, sBH))
    G("s_add_u32 %s, %s, %s" % (sTc, sTc, sBH))
    G("v_add_u32 %s, %s, %s" % (vA, sTc, vL16))
    G("s_mul_i32 %s, %s, %d" % (sBH, sW, 28 * UNIT))
    G("s_lshl_b32 %s, %s, 17" % (sBO, sW))
    G("s_add_u32 %s, %s, 0x%x" % (sPollH, sPollH, WS_G))
    G("v_mov_b32 %s, %s" % (t0, sPollH))
    G("v_mov_b32 %s, 0x7fffff00" % t4)
    G("v_cmp_eq_u32 vcc, 63, %s" % vL)
    G("v_cndmask_b32 %s, %s, %s, vcc" % (vGoff, t4, t0))
    G("s_lshl_b32 %s, %s, 1" % (sTc, sRB))
    G("s_add_u32 %s, %s, %s" % (sCntGq, sTc, sRW))
    G("s_lshl_b32 %s, %s, 2" % (sCntSig, sCntGq))
    G("s_lshr_b32 %s, %s, 2" % (sPoll, sCG))
    G("s_add_u32 %s, %s, %s" % (sCntSig, sCntSig, sPoll))
    G("s_lshr_b32 %s, %s, 3" % (sPoll, sCG))
    G("s_add_u32 %s, %s, %s" % (sCntGsig, sTc, sPoll))
    G("s_lshl_b32 %s, %s, 1" % (sCntKV, sP))
    G("s_add_u32 %s, %s, %s" % (sCntKV, sCntKV, sCW))
    G("s_lshl_b32 %s, %s, 2" % (sCntH, sR2))
    G("s_add_u32 %s, %s, %s" % (sCntH, sCntH, sW))
    G("s_mov_b32 %s, %s" % (sCntG, sR2))
    for s, b in ((sCntSig, 0), (sCntKV, 128), (sCntGsig, 144), (sCntH, 0), (sCntG, 144), (sCntGq, 144)):
        G("s_lshl_b32 %s, %s, 8" % (s, s))
        G("s_add_u32 %s, %s, 0x%x" % (s, s, WS_CNT + b * 256))
    G("s_waitcnt lgkmcnt(0)")
    for x in bias_lines(BIAS, STMP) + bias_lines(BIAS + 16, STMP + 16):
        G(x)
    G("s_lshl_b32 %s, %s, 7" % (sTc, sCT))
    G("s_load_dwordx16 s[%d:%d], s[38:39], %s" % (STMP, STMP + 15, sTc))
    G("s_add_u32 %s, %s, 64" % (sTc, sTc))
    G("s_load_dwordx16 s[%d:%d], s[38:39], %s" % (STMP + 16, STMP + 31, sTc))
    G.waitvm("g")
    L = []
    GU = TMP + 12
    XU = TMP + 20
    for i in range(4):
        L.append("v_lshlrev_b32 v%d, 16, v%d" % (GU + 2 * i, GW + i))
        L.append("v_and_b32 v%d, %s, v%d" % (GU + 2 * i + 1, vMaskHi, GW + i))
    for r, GX in enumerate((GX0, GX1)):
        for i in range(4):
            L.append("v_lshlrev_b32 v%d, 16, v%d" % (XU + 2 * i, GX + i))
            L.append("v_and_b32 v%d, %s, v%d" % (XU + 2 * i + 1, vMaskHi, GX + i))
        for i in range(8):
            L.append("v_mul_f32 v%d, v%d, v%d" % (XU + i, XU + i, GU + i))
        for i in range(4):
            L.append("v_cvt_pk_bf16_f32 v%d, v%d, v%d" % (GX + i, XU + 2 * i, XU + 2 * i + 1))
        for i in range(4):
            L.append("v_lshlrev_b32 v%d, 16, v%d" % (XU + 2 * i, GX + i))
            L.append("v_and_b32 v%d, %s, v%d" % (XU + 2 * i + 1, vMaskHi, GX + i))
        for i in range(4):
            L.append("v_add_f32 v%d, v%d, v%d" % (XU + i, XU + i, XU + 4 + i))
        L.append("v_add_f32 v%d, v%d, v%d" % (XU, XU, XU + 2))
        L.append("v_add_f32 v%d, v%d, v%d" % (XU + 1, XU + 1, XU + 3))
        L.append("v_add_f32 v%d, v%d, v%d" % (vGv + r, XU, XU + 1))
    for mod in ("row_shr:1 row_mask:0xf", "row_shr:2 row_mask:0xf", "row_shr:4 row_mask:0xf", "row_shr:8 row_mask:0xf",
                "row_bcast:15 row_mask:0xa", "row_bcast:31 row_mask:0xc"):
        for r in range(2):
            L.append("v_add_f32_dpp v%d, v%d, v%d %s bank_mask:0xf" % (vGv + r, vGv + r, vGv + r, mod))
    L.append("v_cvt_pk_bf16_f32 v%d, v%d, v%d" % (XU, vGv, vGv + 1))
    L.append("v_lshlrev_b32 v%d, 16, v%d" % (vGv, XU))
    L.append("v_and_b32 v%d, %s, v%d" % (vGv + 1, vMaskHi, XU))
    for r in range(2):
        L.append("v_mul_f32 v%d, 0xbfb8aa3b, v%d" % (vGv + r, vGv + r))
    for r in range(2):
        L.append("v_exp_f32 v%d, v%d" % (vGv + r, vGv + r))
    for r in range(2):
        L.append("v_add_f32 v%d, 1.0, v%d" % (vGv + r, vGv + r))
    for r in range(2):
        L.append("v_rcp_f32 v%d, v%d" % (vGv + r, vGv + r))
    L.append("v_cvt_pk_bf16_f32 v%d, v%d, v%d" % (XU, vGv, vGv + 1))
    L.append("v_lshlrev_b32 v%d, 16, v%d" % (vGv, XU))
    L.append("v_and_b32 v%d, %s, v%d" % (vGv + 1, vMaskHi, XU))
    G.sprinkle(L, 12)

    if isQ:
        p2unit = [0, 0, 4, 4, 1, 1, 5, 5]
        for c in range(8):
            ev = "B6" if c < 4 else "B7"
            for i in range(2):
                pre = chunk_pre(c, pitchB, False) if i == 0 else []
                G.push(pre + ["s_lshr_b32 m0, %s, 1" % sM0w, "s_add_u32 m0, m0, %d" % (p2unit[c] * UNIT + (c & 1) * 8192 + i * 1024)],
                       "buffer_load_dwordx4 %s, %s, %s offen lds" % (vWp2[i], srdB, sWs), ("c2", c), ev)
        ulist = [(8, None), (2, "B8"), (6, "B8"), (3, "B9"), (7, "B9"), (0, "C2"), (4, "C3"), (1, "C4"), (5, "C5")]
    else:
        p2unit = [0, 4, 1, 5, 2, 6, 3, 7]
        for c in range(8):
            ev = "B%d" % (6 + c // 2)
            for i in range(4):
                pre = chunk_pre(c, pitchB, False) if i == 0 else []
                G.push(pre + ["s_add_u32 m0, %s, %d" % (sM0w, p2unit[c] * UNIT + i * 1024)],
                       "buffer_load_dwordx4 %s, %s, %s offen lds" % (vWp2[i], srdB, sWs), ("c2", c), ev)
        ulist = [(8, None)] + [(p2unit[c], "C%d" % (c + 2)) for c in range(8)]

    steps = [("h", u) for u in list(range(8)) + list(range(20, 28)) + list(range(8, 20))] + [("o", i) for i in range(8)]

    def push_w2(s, ev):
        k = (s % 18) // 2
        kind, u = steps[s]
        for j4 in range(2):
            pre = ["s_add_u32 %s, %s, %d" % (sWs, sBH if kind == "h" else sBO, u * UNIT)] if j4 == 0 else []
            G.push(pre + ["s_add_u32 m0, %s, %d" % (sM0w, ulist[k][0] * UNIT + (s & 1) * 2048 + j4 * 1024)],
                   "buffer_load_dwordx4 %s, %s, %s offen lds" % (vW2s[j4], SRD_W2 if kind == "h" else SRD_WO, sWs), ("w2", s), ev)
    for s in range(18):
        push_w2(s, ulist[s // 2][1])

    def reads1(g):
        c, t = g >> 2, g & 3
        fb = FR + (g % 3) * 8
        out = []
        for R in range(2):
            out.append(("ds_read_b128 %s, %s offset:%d" % (ar((g * 2 + R) * 4, 4), vXr[R][t], (c % 4) * UNIT), ("r1", g)))
        for tl in range(2):
            for j4 in range(2):
                out.append(("ds_read_b64_tr_b16 %s, %s offset:%d" % (vr(fb + tl * 4 + j4 * 2, 2), vWr, (c % 4) * UNIT + t * 4096 + j4 * 1024 + tl * 512), ("r1", g)))
        return out

    G.stamp(1)
    G.need(("c1", 0))
    G.barrier("B0")
    G.stamp(2)
    for g in range(2):
        for x in reads1(g):
            G(*x)
    for g in range(32):
        if (g + 2) % 4 == 0:
            c = (g + 2) // 4
            if c < 8:
                G.need(("c1", c))
            G.barrier("B%d" % c)
        if g == 8:
            G.init_issue()
        rd = reads1(g + 2) if g + 2 < 32 else []
        G.waitlg(("r1", g))
        fb = FR + (g % 3) * 8
        n = 0
        for tl in range(2):
            for R in range(2):
                d = vr(ACC + (tl * 2 + R) * 16, 16)
                x = ar((g * 2 + R) * 4, 4)
                wv = vr(fb + tl * 4, 4)
                cin = d if g > 0 else (vr(BIAS + tl * 16, 16) if isQ else "0")
                if isQ:
                    G("v_mfma_f32_32x32x16_bf16 %s, %s, %s, %s" % (d, wv, x, cin))
                else:
                    G("v_mfma_f32_32x32x16_bf16 %s, %s, %s, %s" % (d, x, wv, cin))
                for y in rd[2 * n:2 * n + 2]:
                    G(*y)
                if n in (1, 3):
                    G.fill(1)
                n += 1
    G.barrier("B9")
    G.stamp(3)

    def relu2_store(base, voff, soff, tag):
        out = []
        for i in range(16):
            out.append("v_max_f32 v%d, 0, v%d" % (base + i, base + i))
        for i in range(8):
            out.append("v_pk_mul_f32 %s, %s, %s" % (vr(base + 2 * i, 2), vr(base + 2 * i, 2), vr(base + 2 * i, 2)))
        for i in range(8):
            out.append("v_cvt_pk_bf16_f32 v%d, v%d, v%d" % (base + i, base + 2 * i, base + 2 * i + 1))
        out.append(("buffer_store_dwordx4 %s, %s, %s, %s offen sc1" % (vr(base, 4), voff, SRD_WS, soff), tag))
        out.append("s_add_u32 %s, %s, %d" % (sTb, soff, UNIT))
        out.append(("buffer_store_dwordx4 %s, %s, %s, %s offen sc1" % (vr(base + 4, 4), voff, SRD_WS, sTb), tag))
        return out

    def phi_pack(base, tmp):
        out = []
        for i in range(16):
            out.append("v_mul_f32 v%d, 0x3fb8aa3b, v%d" % (tmp + i, base + i))
        for i in range(16):
            out.append("v_exp_f32_e64 v%d, v%d clamp" % (tmp + i, tmp + i))
            out.append("v_max_f32 v%d, 0x358637bd, v%d" % (base + i, base + i))
        for i in range(8):
            out.append("v_pk_add_f32 %s, %s, %s" % (vr(base + 2 * i, 2), vr(base + 2 * i, 2), vr(tmp + 2 * i, 2)))
        for i in range(8):
            out.append("v_cvt_pk_bf16_f32 v%d, v%d, v%d" % (base + i, base + 2 * i, base + 2 * i + 1))
        return out

    gstore = ("buffer_store_dwordx2 %s, %s, %s, 0 offen sc1" % (vr(vGv, 2), vGoff, SRD_WS), "pub1")

    if isQ:
        L = [gstore]
        for tl in range(2):
            for R in range(2):
                L += relu2_store(ACC + (tl * 2 + R) * 16, vSt[R], sUA if tl == 0 else sUB, "pub1")
        G.sprinkle(L, 16)
    else:
        L = []
        for R in range(2):
            L += phi_pack(ACC + R * 16, TMP)
        for R in range(2):
            b = ACC + 32 + R * 16
            for i in range(8):
                L.append("v_cvt_pk_bf16_f32 v%d, v%d, v%d" % (b + i, b + 2 * i, b + 2 * i + 1))
        ONES = FR
        for i in range(4):
            L.append("v_mov_b32 v%d, 0x3f803f80" % (ONES + i))
        KD, ZD = TMP, TMP + 16
        n = 0
        for R in range(2):
            for kk in range(2):
                pk = vr(ACC + R * 16 + kk * 4, 4)
                vv = vr(ACC + 32 + R * 16 + kk * 4, 4)
                L.append("v_mfma_f32_32x32x16_bf16 %s, %s, %s, %s" % (vr(KD, 16), pk, vv, vr(KD, 16) if n else "0"))
                n += 1
        n = 0
        for R in range(2):
            for kk in range(2):
                pk = vr(ACC + R * 16 + kk * 4, 4)
                L.append("v_mfma_f32_32x32x16_bf16 %s, %s, %s, %s" % (vr(ZD, 16), vr(ONES, 4), pk, vr(ZD, 16) if n else "0"))
                n += 1
        G.sprinkle(L, 14)
        G("v_and_b32 %s, 16, %s" % (t0, vL))
        G("v_cmp_eq_u32 vcc, 0, %s" % t0)
        G("s_lshl_b32 %s, %s, 10" % (sTc, sW))
        G("s_add_u32 %s, %s, %d" % (sTc, sTc, MISC))
        G("v_add_u32 %s, %s, %s" % (t0, sTc, vL16))
        G("v_xor_b32 %s, 0x800, %s" % (t1, t0))
        G("s_lshl_b32 %s, %s, 8" % (sTc, sW))
        G("s_add_u32 %s, %s, %d" % (sTc, sTc, MISC + 4096))
        G("v_lshl_add_u32 %s, %s, 2, %s" % (t2, vL, sTc))
        G("v_xor_b32 %s, 0x200, %s" % (t3, t2))
        for i in range(8):
            G("v_cndmask_b32 v%d, v%d, v%d, vcc" % (KD + i, KD + 8 + i, KD + i))
        G("s_cmp_eq_u32 %s, 0" % sRW)
        G("s_cbranch_scc1 LK_noswap")
        for i in range(4):
            G("v_swap_b32 v%d, v%d" % (KD + i, KD + 4 + i), "cond")
        G("LK_noswap:")
        G("ds_write_b128 %s, %s" % (t0, vr(KD + 4, 4)), "kx")
        G("ds_write_b32 %s, v%d" % (t2, ZD), "kx")
        G.fill(1)
        G.waitlg("kx")
        G.barrier("BK")
        G("ds_read_b128 %s, %s" % (vr(KD + 4, 4), t1), "kr")
        G("ds_read_b32 v%d, %s" % (ZD + 1, t3), "kr")
        G("s_lshl_b32 %s, %s, 1" % (sTc, sP))
        G("s_add_u32 %s, %s, %s" % (sTc, sTc, sCW))
        G("s_lshl_b32 %s, %s, 4" % (sTc, sTc))
        G("s_add_u32 %s, %s, %s" % (sTc, sTc, sRB))
        G("s_lshl_b32 %s, %s, 1" % (sTb, sTc))
        G("s_add_u32 %s, %s, %s" % (sTb, sTb, sRW))
        G("s_lshl_b32 %s, %s, 10" % (sTb, sTb))
        G("s_add_u32 %s, %s, 0x%x" % (sTb, sTb, WS_KVP))
        G("s_lshl_b32 %s, %s, 7" % (sTc, sTc))
        G("s_add_u32 %s, %s, 0x%x" % (sTc, sTc, WS_Z))
        G.waitlg("kr")
        for i in range(2):
            G("v_pk_add_f32 %s, %s, %s" % (vr(KD + 2 * i, 2), vr(KD + 2 * i, 2), vr(KD + 4 + 2 * i, 2)))
        G("v_add_f32 v%d, v%d, v%d" % (ZD, ZD, ZD + 1))
        G("buffer_store_dwordx4 %s, %s, %s, %s offen sc1" % (vr(KD, 4), vL16, SRD_WS, sTb), "pub1")
        G("buffer_store_dword v%d, %s, %s, %s offen sc1" % (ZD, vS4, SRD_WS, sTc), "pub1")
        G(*gstore)
    G.stamp(4)

    def pub1_signal():
        G.waitvm("pub1")
        G.init_gate()
        G.signal(sCntGsig, 1)
        if isQ:
            G.signal(sCntSig, 1)
        else:
            G.signal(sCntKV, 1)
        G.stamp(5)

    def reads2(g):
        c, t = g >> 2, g & 3
        fb = FR + (g % 3) * 8
        u = p2unit[c]
        hi = 1 if u >= 4 else 0
        out = []
        if isQ:
            for j4 in range(2):
                out.append(("ds_read_b64_tr_b16 %s, %s offset:%d" % (vr(fb + j4 * 2, 2), vP2r[hi], (u % 4) * UNIT + (c & 1) * 8192 + t * 2048 + j4 * 256), ("r2", g)))
        else:
            for tl in range(2):
                for j4 in range(2):
                    out.append(("ds_read_b64_tr_b16 %s, %s offset:%d" % (vr(fb + tl * 4 + j4 * 2, 2), vP2r[tl * 2 + hi], (u % 4) * UNIT + t * 4096 + j4 * 1024), ("r2", g)))
        return out

    per = 8 if isQ else 4
    G.need(*[("c2", c) for c in range(per // 4)])
    G.barrier("C0")
    for g in range(2):
        for x in reads2(g):
            G(*x)
    sig_step = CFG["pubdelay"] * 4 + 2 if not isQ else CFG["pubdelay"] * 8 - 2
    for g in range(32):
        if (g + 2) % per == 0:
            i = (g + 2) // per
            if i * per < 32:
                G.need(*[("c2", c) for c in range(i * per // 4, (i + 1) * per // 4)])
            G.barrier("C%d" % i)
        if g == sig_step:
            pub1_signal()
        rd = reads2(g + 2) if g + 2 < 32 else []
        G.waitlg(("r2", g))
        fb = FR + (g % 3) * 8
        jobs = [(0, 0), (0, 1)] if isQ else [(0, 0), (0, 1), (1, 0)]
        for n, (tl, R) in enumerate(jobs):
            d = vr(ACC2 + n * 16, 16)
            cin = d if g > 0 else ("0" if isQ else vr(BIAS + tl * 16, 16))
            G("v_mfma_f32_32x32x16_bf16 %s, %s, %s, %s" % (d, vr(fb + tl * 4, 4), ar((g * 2 + R) * 4, 4), cin))
            for y in rd[2 * n:2 * n + 2]:
                G(*y)
            if n == len(jobs) - 1 or (not isQ and n == 0 and g % 3 == 0):
                G.fill(1)
    G.barrier("C%d" % (32 // per + 1))
    G.stamp(6)

    def w2reads(s, dst):
        k = (s % 18) // 2
        u = ulist[k][0]
        out = []
        for T in range(2):
            for j4 in range(2):
                out.append(("ds_read_b64_tr_b16 %s, %s offset:%d" % (dst(T * 4 + j4 * 2), vW2r[u // 4], (u % 4) * UNIT + (s & 1) * 2048 + j4 * 1024 + T * 512), ("wr", s)))
        return out

    drained = [0]

    def drain(k):
        G.need(("w2", 2 * k), ("w2", 2 * k + 1))
        for s in (2 * k, 2 * k + 1):
            for x in w2reads(s, lambda o, s=s: ar(s * 8 + o, 2)):
                G(*x)
        if k > 0:
            release(k - 1)

    def release(k):
        G.waitlg(("wr", 2 * k + 1))
        G.ev.add("D%d" % k)

    for s in range(18, 36):
        push_w2(s, "D%d" % ((s - 18) // 2))

    def b2_setup():
        l1, l2 = G.lab("bz"), G.lab("bd")
        G("s_cmp_lg_u32 %s, 0" % sW)
        G("s_cbranch_scc1 %s" % l1)
        for x in bias_lines(BIAS, STMP) + bias_lines(BIAS + 16, STMP + 16):
            G(x, "cond")
        G("s_branch %s" % l2, "cond")
        G("%s:" % l1)
        for i in range(32):
            G("v_mov_b32 v%d, 0" % (BIAS + i), "cond")
        G("%s:" % l2)

    if not isQ:
        L = []
        for n, (R, so) in enumerate(((0, sUA), (1, sUA), (0, sUB))):
            L += relu2_store(ACC2 + n * 16, vSt[R], so, "pub2")
        G.sprinkle(L, 16)
        G.stamp(7)
        G.poll_issue(sPollH, sCntH)
        G.poll_issue(sPoll, sCntG)
        for k in range(9):
            drain(k)
            G.fill(4)
            if k == 3:
                b2_setup()
            if k == 5:
                G.waitvm("pub2")
                G.signal(sCntSig, 0x100)
                G.stamp(8)
        release(8)
    else:
        L = []
        for R in range(2):
            L += phi_pack(ACC2 + R * 16, TMP)
        G.poll_issue(sPoll, sCntGq)
        G.sprinkle(L, 14)
        G.gate(sPoll, sCntGq, 0, 32)
        G.poll_issue(sPoll, sCntKV)
        GQ = TMP + 40
        G("s_lshl_b32 %s, %s, 2" % (sTc, sRB))
        G("s_add_u32 %s, %s, %s" % (sTc, sTc, sW))
        G("s_lshl_b32 %s, %s, 7" % (sTc, sTc))
        G("s_add_u32 %s, %s, 0x%x" % (sTc, sTc, WS_G))
        G("buffer_load_dword v%d, %s, %s, %s offen sc1" % (GQ, vS4, SRD_WS, sTc), "gq")
        G("s_xor_b32 %s, %s, 0x80" % (sTc, sTc))
        G("buffer_load_dword v%d, %s, %s, %s offen sc1" % (GQ + 1, vS4, SRD_WS, sTc), "gq")
        for k in range(4):
            drain(k)
            G.fill(4)
        b2_setup()
        G.stamp(7)
        G.gate(sPoll, sCntKV, 0, 32)
        G.stamp(8)
        PK = ACC
        ZL = TMP
        G("s_lshl_b32 %s, %s, 1" % (sTc, sP))
        G("s_add_u32 %s, %s, %s" % (sTc, sTc, sCW))
        G("s_lshl_b32 %s, %s, 1" % (sTc, sTc))
        G("s_add_u32 %s, %s, %s" % (sTc, sTc, sRW))
        G("s_lshl_b32 %s, %s, 14" % (sTb, sTc))
        G("s_add_u32 %s, %s, 0x%x" % (sTb, sTb, WS_KVP))
        G("s_lshl_b32 %s, %s, 10" % (sTc, sTc))
        G("s_add_u32 %s, %s, 0x%x" % (sTc, sTc, WS_Z))
        G("v_lshlrev_b32 %s, 2, %s" % (t4, vL))
        for i in range(4):
            G("buffer_load_dword v%d, %s, %s, %s offen offset:%d sc1" % (ZL + i, t4, SRD_WS, sTc, i * 256), "kvp")
        for i in range(16):
            if i and i % 4 == 0:
                G("s_add_u32 %s, %s, 4096" % (sTb, sTb))
            G("buffer_load_dwordx4 %s, %s, %s, %s offen offset:%d sc1" % (vr(PK + i * 4, 4), vL16, SRD_WS, sTb, (i % 4) * 1024), "kvp")
        for k in range(4, 7):
            drain(k)
            G.fill(2)
        G("s_lshl_b32 %s, %s, 11" % (sTc, sW))
        G("s_add_u32 %s, %s, %d" % (sTc, sTc, MISC))
        G("v_add_u32 %s, %s, %s" % (t0, sTc, vL16))
        G("v_xor_b32 %s, 0x1000, %s" % (t1, t0))
        G("s_lshl_b32 %s, %s, 8" % (sTc, sW))
        G("s_add_u32 %s, %s, %d" % (sTc, sTc, MISC + 8192))
        G("v_add_u32 %s, %s, %s" % (t2, sTc, t4))
        G("v_and_b32 %s, 16, %s" % (t3, vL))
        G("v_cmp_eq_u32 vcc, 0, %s" % t3)
        G("v_xor_b32 %s, 16, %s" % (t3, t3))
        G("v_lshrrev_b32 %s, 5, %s" % (t4, vL))
        G("v_lshl_add_u32 %s, %s, 2, %s" % (t3, t4, t3))
        G("s_lshl_b32 %s, %s, 8" % (sTc, sCW))
        G("s_add_u32 %s, %s, %d" % (sTc, sTc, MISC + 8192))
        G("v_lshl_add_u32 %s, %s, 2, %s" % (t3, t3, sTc))
        G.waitvm("kvp")
        L = []
        L.append("v_add_f32 v%d, v%d, v%d" % (ZL, ZL, ZL + 1))
        L.append("v_add_f32 v%d, v%d, v%d" % (ZL + 2, ZL + 2, ZL + 3))
        for st in (32, 16, 8):
            for i in range(0, st, 2):
                L.append("v_pk_add_f32 %s, %s, %s" % (vr(PK + i, 2), vr(PK + i, 2), vr(PK + st + i, 2)))
        L.append("v_add_f32 v%d, v%d, v%d" % (ZL, ZL, ZL + 2))
        L.append("v_mov_b32 v%d, v%d" % (ZL + 1, ZL))
        L.append("v_permlane32_swap_b32 v%d, v%d" % (ZL, ZL + 1))
        L.append("v_add_f32 v%d, v%d, v%d" % (ZL, ZL, ZL + 1))
        L.append(("ds_write_b128 %s, %s" % (t0, vr(PK, 4)), "qx"))
        L.append(("ds_write_b128 %s, %s offset:1024" % (t0, vr(PK + 4, 4)), "qx"))
        L.append(("ds_write_b32 %s, v%d" % (t2, ZL), "qx"))
        G.sprinkle(L, 12)
        G.waitlg("qx")
        G.barrier("BQ")
        G("ds_read_b128 %s, %s" % (vr(PK + 8, 4), t1), "qr")
        G("ds_read_b128 %s, %s offset:1024" % (vr(PK + 12, 4), t1), "qr")
        G("ds_read_b128 %s, %s" % (vr(PK + 16, 4), t3), "qr")
        G("ds_read_b128 %s, %s offset:32" % (vr(PK + 20, 4), t3), "qr")
        G("ds_read_b128 %s, %s offset:512" % (vr(PK + 24, 4), t3), "qr")
        G("ds_read_b128 %s, %s offset:544" % (vr(PK + 28, 4), t3), "qr")
        G.fill(1)
        G("s_lshl_b32 %s, %s, 1" % (sTb, sP))
        G("s_add_u32 %s, %s, %s" % (sTb, sTb, sCW))
        G("s_lshl_b32 %s, %s, 15" % (sTb, sTb))
        G("s_add_u32 %s, %s, %d" % (sUA, sTb, 112 * UNIT))
        G("s_add_u32 %s, %s, %d" % (sUB, sTb, 113 * UNIT))
        G.waitlg("qr")
        for i in range(0, 8, 2):
            G("v_pk_add_f32 %s, %s, %s" % (vr(PK + i, 2), vr(PK + i, 2), vr(PK + 8 + i, 2)))
            G("v_pk_add_f32 %s, %s, %s" % (vr(PK + 16 + i, 2), vr(PK + 16 + i, 2), vr(PK + 24 + i, 2)))
        for i in range(4):
            G("v_cvt_pk_bf16_f32 v%d, v%d, v%d" % (PK + i, PK + 2 * i, PK + 2 * i + 1))
            G("v_cvt_pk_bf16_f32 v%d, v%d, v%d" % (PK + 16 + i, PK + 16 + 2 * i, PK + 16 + 2 * i + 1))
        A0, A1 = FR, FR + 4
        for i in range(4):
            G("v_cndmask_b32 v%d, v%d, v%d, vcc" % (A0 + i, PK + 16 + i, PK + i))
            G("v_cndmask_b32 v%d, v%d, v%d, vcc" % (A1 + i, PK + i, PK + 16 + i))
        for R in range(2):
            for hd in range(2):
                G("v_mfma_f32_32x32x16_bf16 %s, %s, %s, 0" % (vr(ACC + (R * 2 + hd) * 16, 16), vr(A1 if hd else A0, 4), vr(ACC2 + R * 16 + hd * 4, 4)))
        G.fill(2)
        G.waitvm("gq")
        L = []
        for R in range(2):
            for hd in range(2):
                b = ACC + (R * 2 + hd) * 16
                num, den = (b + 8, b) if hd else (b, b + 8)
                L.append("v_add_f32 v%d, 0x358637bd, v%d" % (den, den))
                L.append("v_rcp_f32 v%d, v%d" % (den, den))
                L.append("v_mul_f32 v%d, v%d, v%d" % (den, den, GQ + R))
                for i in range(4):
                    L.append("v_pk_mul_f32 %s, %s, %s op_sel_hi:[1,0]" % (vr(num + 2 * i, 2), vr(num + 2 * i, 2), vr(den, 2)))
                for i in range(4):
                    L.append("v_cvt_pk_bf16_f32 v%d, v%d, v%d" % (num + i, num + 2 * i, num + 2 * i + 1))
                L.append(("buffer_store_dwordx4 %s, %s, %s, %s offen sc1" % (vr(num, 4), vSt[R], SRD_WS, sUB if hd else sUA), "pub2"))
        G.sprinkle(L, 100)
        G.stamp(9)
        G.poll_issue(sPollH, sCntH)
        G.poll_issue(sPoll, sCntG)
        for k in range(7, 9):
            drain(k)
            G.fill(4)
        release(8)
        G.fill(8)
        G.waitvm("pub2")
        G.signal(sCntSig, 0x10000)

    NRING = 28
    RING = 144

    def aload(s):
        kind, u = steps[s]
        G("s_add_u32 %s, %s, %d" % (sTb, sBH if kind == "h" else sBO, (u if kind == "h" else 112 + u) * UNIT))
        for R in range(2):
            G("buffer_load_dwordx4 %s, %s, %s, %s offen offset:%d sc1" % (ar(RING + ((2 * s + R) % NRING) * 4, 4), vA, SRD_WS, sTb, R * 1024), ("a", s))

    AH = CFG["ahead"]
    assert 2 * (AH + 1) <= NRING
    for s in range(18, 18 + 2 * CFG["r2_early"]):
        G.flush_until(("w2", s))
    G.stamp(10)
    G.gate(sPoll, sCntG, 0, 32)
    G.gate(sPollH, sCntH, 0, 4, pending=False)
    G.stamp(11)
    GO = TMP + 40
    G("s_lshl_b32 %s, %s, 8" % (sTc, sR2))
    G("s_add_u32 %s, %s, 0x%x" % (sTc, sTc, WS_G))
    G("buffer_load_dword v%d, %s, %s, %s offen sc1" % (GO, vS4, SRD_WS, sTc), "go")
    G("buffer_load_dword v%d, %s, %s, %s offen offset:128 sc1" % (GO + 2, vS4, SRD_WS, sTc), "go")

    def issue_a(s):
        if s >= 36:
            return
        if s in (12, 24):
            G.poll_issue(sPollH, sCntH)
        if s == 16:
            G.gate(sPollH, sCntH, 8, 4)
            G.stamp(12)
        if s == 28:
            G.gate(sPollH, sCntH, 16, 4)
            G.stamp(13)
        aload(s)

    for s in range(AH):
        issue_a(s)
        G.fill(2)
    vRW = [TMP + i for i in range(8)]
    vRD = [TMP + 8 + i for i in range(4)]
    vO = TMP + 12
    G("v_and_b32 %s, 15, %s" % (t0, vL))
    G("v_lshrrev_b32 %s, 5, %s" % (t1, vL))
    G("v_xor_b32 %s, %s, %s" % (t1, t1, t0))
    G("v_lshlrev_b32 %s, 4, %s" % (t1, t1))
    G("v_lshl_add_u32 %s, %s, 8, %s" % (t1, t0, t1))
    G("v_bfe_u32 %s, %s, 4, 1" % (t0, vL))
    G("v_lshl_add_u32 %s, %s, 14, %s" % (t1, t0, t1))
    G("v_add_u32 v%d, %s, %s" % (vRW[0], sM0w, t1))
    for i in range(1, 8):
        G("v_xor_b32 v%d, %d, v%d" % (vRW[i], i << 5, vRW[0]))
    G("v_lshrrev_b32 %s, 3, %s" % (t0, vL))
    G("v_and_b32 %s, 7, %s" % (t1, vL))
    G("v_lshlrev_b32 %s, 1, %s" % (t2, t1))
    G("v_xor_b32 %s, %s, %s" % (t2, t2, t0))
    G("v_lshlrev_b32 %s, 4, %s" % (t2, t2))
    G("v_lshl_add_u32 %s, %s, 8, %s" % (t2, t0, t2))
    G("s_lshl_b32 %s, %s, 14" % (sTc, sW))
    G("v_add_u32 v%d, %s, %s" % (vRD[0], sTc, t2))
    G("v_xor_b32 v%d, 16, v%d" % (vRD[1], vRD[0]))
    G("v_xor_b32 v%d, 0x880, v%d" % (vRD[2], vRD[0]))
    G("v_xor_b32 v%d, 0x890, v%d" % (vRD[3], vRD[0]))
    G("v_lshlrev_b32 %s, 4, %s" % (t1, t1))
    G("v_lshl_add_u32 v%d, %s, 10, %s" % (vO, t0, t1))

    def jit(s):
        if 18 <= s < 36:
            G.need(("w2", s))
            fb = FR + (s % 3) * 8
            return w2reads(s, lambda o: vr(fb + o, 2))
        return []

    for s in range(36):
        if s == 28:
            G.waitvm("go")
            for R in range(2):
                G("v_sub_f32 v%d, 1.0, v%d" % (GO + 2 * R, GO + 2 * R))
            G("v_cvt_pk_bf16_f32 v%d, v%d, v%d" % (GO + 1, GO, GO + 2))
            G("v_lshlrev_b32 v%d, 16, v%d" % (GO, GO + 1))
            G("v_and_b32 v%d, %s, v%d" % (GO + 2, vMaskHi, GO + 1))
            for T in range(2):
                for R in range(2):
                    b = ACC + (T * 2 + R) * 16
                    for i in range(8):
                        G("v_pk_mul_f32 %s, %s, %s op_sel_hi:[1,0]" % (vr(b + 2 * i, 2), vr(b + 2 * i, 2), vr(GO + 2 * R, 2)))
        rd = jit(s + 2)
        G.waitvm(("a", s))
        if s >= 18:
            G.waitlg(("wr", s))
        n = 0
        for T in range(2):
            for R in range(2):
                d = vr(ACC + (T * 2 + R) * 16, 16)
                wv = ar(s * 8 + T * 4, 4) if s < 18 else vr(FR + (s % 3) * 8 + T * 4, 4)
                cin = d if s > 0 else vr(BIAS + T * 16, 16)
                G("v_mfma_f32_32x32x16_bf16 %s, %s, %s, %s" % (d, wv, ar(RING + ((2 * s + R) % NRING) * 4, 4), cin))
                for y in rd[2 * n:2 * n + 2]:
                    G(*y)
                if n == 2:
                    issue_a(s + AH)
                if n == 3:
                    G.fill(2)
                n += 1
    assert not G.q
    G.stamp(14)
    for R in range(2):
        for T in range(2):
            for m in range(4):
                G("ds_write_b128 v%d, %s offset:%d" % (vRW[T * 4 + m], vr(ACC + (T * 2 + R) * 16 + 4 * m, 4), R * 32768), "rw")
    G("s_lshl_b32 %s, %s, 2" % (sTc, sR2))
    G("s_add_u32 %s, %s, %s" % (sTc, sTc, sW))
    G("s_lshl_b32 %s, %s, 14" % (sTc, sTc))
    G("s_lshl_b32 %s, %s, 7" % (sTb, sCT))
    G("s_add_u32 %s, %s, %s" % (sTc, sTc, sTb))
    G("s_add_u32 %s, %s, 0x2000" % (sTb, sTc))
    G.waitlg("rw")
    G.barrier("BF")
    RD = ACC2
    for ps in range(2):
        for src in range(4):
            for e in range(2):
                G("ds_read_b128 %s, v%d offset:%d" % (vr(RD + ps * 32 + src * 8 + e * 4, 4), vRD[ps * 2 + e], src * 4096), ("rd", ps))
    for ps in range(2):
        b = RD + ps * 32
        G.waitlg(("rd", ps))
        for i in range(0, 8, 2):
            G("v_pk_add_f32 %s, %s, %s" % (vr(b + i, 2), vr(b + i, 2), vr(b + 8 + i, 2)))
            G("v_pk_add_f32 %s, %s, %s" % (vr(b + 16 + i, 2), vr(b + 16 + i, 2), vr(b + 24 + i, 2)))
        for i in range(0, 8, 2):
            G("v_pk_add_f32 %s, %s, %s" % (vr(b + i, 2), vr(b + i, 2), vr(b + 16 + i, 2)))
        for i in range(4):
            G("v_cvt_pk_bf16_f32 v%d, v%d, v%d" % (b + i, b + 2 * i, b + 2 * i + 1))
        G("buffer_store_dwordx4 %s, v%d, %s, %s offen" % (vr(b, 4), vO, SRD_OUT, sTb if ps else sTc), "out")
    if CFG["stamps"]:
        G.waitvm("out")
        G.stamp(15)
        G("v_writelane_b32 %s, %s, 16" % (vStamp, sTO))
        G("s_lshl_b32 %s, %s, 4" % (sTc, sRB))
        G("s_add_u32 %s, %s, %s" % (sTc, sTc, sCG))
        G("s_lshl_b32 %s, %s, 2" % (sTc, sTc))
        G("s_add_u32 %s, %s, %s" % (sTc, sTc, sW))
        G("s_lshl_b32 %s, %s, 8" % (sTc, sTc))
        G("s_add_u32 %s, %s, 0x%x" % (sTc, sTc, WS_DBG))
        G("v_lshlrev_b32 %s, 2, %s" % (t0, vL))
        G("buffer_store_dword %s, %s, %s, %s offen" % (vStamp, t0, SRD_WS, sTc))
    G("s_endpgm")
    return G


def main():
    hdr = open("cdna_kernels/%s.s.ref" % NAME).read().split("\n")
    head = []
    for line in hdr:
        if line.startswith("; @launch"):
            head.append("; @launch grid=(256,1,1) block=(256,1,1) lds=163840")
        elif line.startswith(";"):
            head.append(line)
        else:
            break
    P = prologue()
    body = []
    K = build(False)
    Q = build(True)
    kl = pad_hazards(resolve(P.l + K.l))
    ql = pad_hazards(resolve(P.l + Q.l))
    idx = [i for i, x in enumerate(ql) if x.text == "L_Q:"][0]
    ql = ql[idx:]
    s = "\n".join(head) + "\n"
    s += '.amdgcn_target "amdgcn-amd-amdhsa--gfx950"\n.text\n.globl %s_kernel\n.p2align 8\n.type %s_kernel,@function\n%s_kernel:\n' % (NAME, NAME, NAME)
    s += render(kl) + "\n.p2align 6\n" + render(ql) + "\nL_end:\n    s_endpgm\n"
    s += """.section .rodata,"a"
.p2align 6
.amdhsa_kernel %s_kernel
  .amdhsa_next_free_vgpr 512
  .amdhsa_next_free_sgpr 102
  .amdhsa_accum_offset 256
  .amdhsa_group_segment_fixed_size 0
  .amdhsa_kernarg_size 96
  .amdhsa_user_sgpr_count 2
  .amdhsa_user_sgpr_kernarg_segment_ptr 1
  .amdhsa_system_sgpr_workgroup_id_x 1
  .amdhsa_float_denorm_mode_32 3
  .amdhsa_float_denorm_mode_16_64 3
.end_amdhsa_kernel
""" % NAME
    open(sys.argv[1], "w").write(s)
    print("wrote", sys.argv[1], "instr K", len(kl), "Q", len(ql))


if __name__ == "__main__":
    main()
```

```python
import sys
from asmdsl import *

NAME = "gated_mix__linear_attn_block__dense_activation_squared_relu__prompt"

CFG = dict(stamps=0, rot=0, r2_early=9, ahead=10, pubdelay=2)
for a in sys.argv[2:]:
    k, v = a.split("=")
    CFG[k] = int(v)

A_GRP = 144 * 16384
WS_KVP = 0x900000
WS_Z = 0x980000
WS_G = 0x990000
WS_CNT = 0x9A0000
WS_DBG = 0xA00000
WS_SIZE = 0x1000000
UNIT = 16384
MISC = 9 * UNIT

SRD_X, SRD_QKV, SRD_W1, SRD_WO, SRD_W2, SRD_WS, SRD_OUT, SRD_GATE = [("s[%d:%d]" % (b, b + 3)) for b in range(4, 36, 4)]
WSP = "s[24:25]"
sW, sRW, sCW, sRB, sCG, sP, sR2, sCT = ["s%d" % i for i in range(42, 50)]
sXs, sWs, sRot, sTa, sTb, sM0w, sBH, sBO = ["s%d" % i for i in range(50, 58)]
sCntSig, sCntKV, sCntGsig, sCntH, sCntG, sCntGq = ["s%d" % i for i in range(58, 64)]
STMP = 64
sPollH, sPoll, sTO, sTc = "s96", "s97", "s98", "s99"
sUA, sUB = "s3", "s2"

vL = "v1"
vXs = ["v%d" % i for i in range(2, 6)]
vW1 = ["v%d" % i for i in range(6, 10)]
vWp2 = ["v%d" % i for i in range(10, 14)]
vXr = [["v%d" % (14 + R * 4 + t) for t in range(4)] for R in range(2)]
vWr = "v22"
vP2r = ["v23", "v24", "v25", "v26"]
vW2s = ["v27", "v28"]
vW2r = ["v29", "v30", "v31"]
vSt = ["v32", "v33"]
vL16, vS4, vA, vGoff = "v34", "v35", "v36", "v37"
vGv = 38
FR = 40
ACC = 64
ACC2 = 128
BIAS = 176
TMP = 208
vStamp = "v255"
vMaskHi = "v254"


def vr(b, n=1):
    return "v%d" % b if n == 1 else "v[%d:%d]" % (b, b + n - 1)


def ar(b, n=1):
    return "a%d" % b if n == 1 else "a[%d:%d]" % (b, b + n - 1)


class Gen(Prog):
    def __init__(self, pfx):
        super().__init__()
        self.q = []
        self.ev = set()
        self.pre_done = False
        self.pfx = pfx
        self.nl = 0

    def lab(self, n):
        self.nl += 1
        return "L%s_%s%d" % (self.pfx, n, self.nl)

    def push(self, pre, dma, tag, event=None):
        self.q.append((pre, dma, tag, event))

    def fill(self, n=1):
        for _ in range(n):
            if not self.q:
                return
            pre, dma, tag, event = self.q[0]
            if event is not None and event not in self.ev:
                return
            self.q.pop(0)
            if not self.pre_done:
                for x in pre:
                    self(x)
            self(dma, tag)
            self.pre_done = False
            if self.q:
                for x in self.q[0][0]:
                    self(x)
                self.pre_done = True

    def flush_until(self, tag):
        while any(x[2] == tag for x in self.q):
            n = len(self.q)
            self.fill(1)
            if len(self.q) == n:
                raise ValueError("queue blocked on event %r while flushing to %r" % (self.q[0][3], tag))

    def need(self, *tags):
        for t in tags:
            self.flush_until(t)
        self.waitvm(*tags)

    def barrier(self, name):
        self("s_barrier")
        self.ev.add(name)

    def sprinkle(self, lines, every):
        for i, x in enumerate(lines):
            if isinstance(x, tuple):
                self(x[0], x[1])
            elif callable(x):
                x()
            else:
                self(x)
            if (i + 1) % every == 0:
                self.fill(1)

    def stamp(self, i):
        if CFG["stamps"]:
            self("s_memrealtime s[100:101]")
            self("s_waitcnt lgkmcnt(0)")
            self("v_writelane_b32 %s, s100, %d" % (vStamp, i))
            self("s_memtime s[100:101]")
            self("s_waitcnt lgkmcnt(0)")
            self("v_writelane_b32 %s, s100, %d" % (vStamp, 32 + i))

    def fstamp(self, grp, i):
        if CFG.get("fine", 0) == grp:
            self("s_memtime s[%d:%d]" % (STMP + 2 * i, STMP + 2 * i + 1))

    def poll_issue(self, reg, off):
        self("s_mov_b32 %s, 0" % reg)
        self("s_atomic_add %s, %s, %s glc" % (reg, WSP, off))

    def gate(self, reg, off, shift, target, pending=True):
        top, done = self.lab("g"), self.lab("gd")
        if pending:
            self("s_waitcnt lgkmcnt(0)")
        self("%s:" % top)
        self("s_bfe_u32 %s, %s, 0x%x" % (sTc, reg, (8 << 16) | shift))
        self("s_cmp_ge_u32 %s, %d" % (sTc, target))
        self("s_cbranch_scc1 %s" % done)
        self("s_cmp_eq_u32 %s, 0" % sTO, "cond")
        self("s_cbranch_scc1 %s" % done, "cond")
        self("s_sub_u32 %s, %s, 1" % (sTO, sTO), "cond")
        self("s_mov_b32 %s, 0" % reg, "cond")
        self("s_atomic_add %s, %s, %s glc" % (reg, WSP, off), "cond")
        self("s_waitcnt lgkmcnt(0)", "cond")
        self("s_branch %s" % top, "cond")
        self("%s:" % done)

    def init_issue(self):
        self("s_load_dword %s, s[40:41], 0x0" % sPoll)

    def init_gate(self):
        top, done = self.lab("i"), self.lab("id")
        self("s_waitcnt lgkmcnt(0)")
        self("%s:" % top)
        self("s_cmp_lg_u32 %s, 0" % sPoll)
        self("s_cbranch_scc1 %s" % done)
        self("s_cmp_eq_u32 %s, 0" % sTO, "cond")
        self("s_cbranch_scc1 %s" % done, "cond")
        self("s_sub_u32 %s, %s, 1" % (sTO, sTO), "cond")
        self("s_sleep 8", "cond")
        self("s_atomic_add %s, s[40:41], 0x0 glc" % sPoll, "cond")
        self("s_waitcnt lgkmcnt(0)", "cond")
        self("s_branch %s" % top, "cond")
        self("%s:" % done)

    def signal(self, off, val):
        self("s_atomic_add %s, %s, %s" % ("s0" if val == 1 else "s1", WSP, off))


def bias_lines(dst, sbase):
    out = []
    for hh in range(2):
        if hh == 0:
            out.append("s_mov_b32 exec_hi, 0")
        else:
            out.append("s_mov_b32 exec_hi, -1")
            out.append("s_mov_b32 exec_lo, 0")
        for m in range(4):
            for e in range(2):
                s = "s%d" % (sbase + 4 * m + 2 * hh + e)
                out.append("v_lshlrev_b32_e64 v%d, 16, %s" % (dst + 4 * m + 2 * e, s))
                out.append("v_and_b32 v%d, %s, %s" % (dst + 4 * m + 2 * e + 1, s, vMaskHi))
    out.append("s_mov_b64 exec, -1")
    return out


def prologue():
    P = Prog()
    P("s_cmp_ge_u32 s2, 256")
    P("s_cbranch_scc1 L_end")
    for srd, off in ((4, 0), (8, 8), (12, 32), (32, 64), (24, 88), (36, 40), (40, 80), (16, 16), (20, 48), (28, 72), (38, 56)):
        P("s_load_dwordx2 s[%d:%d], s[0:1], %d" % (srd, srd + 1, off))
    P("v_lshrrev_b32 v2, 6, v0")
    P("v_and_b32 %s, 63, v0" % vL)
    P("v_readfirstlane_b32 %s, v2" % sW)
    for srd, size in ((4, 2097152), (8, 1572864), (12, 1835008), (16, 524288), (20, 1835008), (24, WS_SIZE), (28, 2097152), (32, 1024)):
        P("s_mov_b32 s%d, 0x%x" % (srd + 2, size))
        P("s_mov_b32 s%d, 0x20000" % (srd + 3))
    P("s_and_b32 %s, s2, 7" % sTa)
    P("s_lshr_b32 %s, s2, 3" % sTb)
    P("s_and_b32 %s, %s, 1" % (sRB, sTa))
    P("s_lshl_b32 %s, %s, 3" % (sRB, sRB))
    P("s_and_b32 %s, %s, 7" % (sTc, sTb))
    P("s_add_u32 %s, %s, %s" % (sRB, sRB, sTc))
    P("s_lshr_b32 %s, %s, 1" % (sCG, sTa))
    P("s_lshl_b32 %s, %s, 2" % (sCG, sCG))
    P("s_lshr_b32 %s, %s, 3" % (sTc, sTb))
    P("s_add_u32 %s, %s, %s" % (sCG, sCG, sTc))
    P("s_lshr_b32 %s, %s, 1" % (sP, sCG))
    P("s_lshl_b32 %s, %s, 2" % (sR2, sTa))
    P("s_and_b32 %s, %s, 3" % (sTc, sTb))
    P("s_add_u32 %s, %s, %s" % (sR2, sR2, sTc))
    P("s_lshr_b32 %s, %s, 2" % (sCT, sTb))
    if CFG["rot"] == 0:
        P("s_mov_b32 %s, 0" % sRot)
    elif CFG["rot"] == 1:
        P("s_mov_b32 %s, %s" % (sRot, sTa))
    else:
        P("s_lshl_b32 %s, %s, 1" % (sRot, sCG))
        P("s_add_u32 %s, %s, %s" % (sRot, sRot, sRB))
    P("s_lshr_b32 %s, %s, 1" % (sRW, sW))
    P("s_and_b32 %s, %s, 1" % (sCW, sW))
    P("s_lshl_b32 %s, %s, 12" % (sM0w, sW))
    P("s_mov_b32 %s, 0x8000" % sTO)
    P("v_lshlrev_b32 %s, 4, %s" % (vL16, vL))
    t0, t1, t2, t3 = "v240", "v241", "v242", "v243"
    P("v_lshrrev_b32 %s, 3, %s" % (t0, vL))
    P("v_lshrrev_b32 %s, 4, %s" % (t1, vL))
    P("v_and_b32 %s, 7, %s" % (t2, vL))
    P("v_xor_b32 %s, %s, %s" % (t2, t2, t1))
    P("v_lshlrev_b32 %s, 4, %s" % (t2, t2))
    P("s_lshl_b32 %s, %s, 15" % (sTc, sW))
    P("v_lshl_add_u32 %s, %s, 10, %s" % (t2, t0, t2))
    P("v_add_u32 %s, %s, %s" % (vXs[0], sTc, t2))
    P("v_xor_b32 %s, 64, %s" % (vXs[1], vXs[0]))
    P("v_add_u32 %s, 0x2000, %s" % (vXs[1], vXs[1]))
    P("v_add_u32 %s, 0x4000, %s" % (vXs[2], vXs[0]))
    P("v_add_u32 %s, 0x4000, %s" % (vXs[3], vXs[1]))
    P("s_bitcmp1_b32 %s, 0" % sCG)
    P("s_cbranch_scc1 L_Q")
    return P


def chunk_pre(c, pitch, with_x):
    pre = ["s_add_u32 %s, %s, %d" % (sTa, sRot, c), "s_and_b32 %s, %s, 7" % (sTa, sTa)]
    if with_x:
        pre += ["s_lshl_b32 %s, %s, 10" % (sXs, sRB), "s_add_u32 %s, %s, %s" % (sXs, sXs, sTa), "s_lshl_b32 %s, %s, 7" % (sXs, sXs)]
    pre += ["s_mul_i32 %s, %s, %d" % (sWs, sTa, 64 * pitch)]
    return pre


def build(isQ):
    G = Gen("Q" if isQ else "K")
    t0, t1, t2, t3, t4 = "v240", "v241", "v242", "v243", "v244"
    srdA, pitchA = (SRD_W1, 3584) if isQ else (SRD_QKV, 3072)
    srdB, pitchB = (SRD_QKV, 3072) if isQ else (SRD_W1, 3584)
    if isQ:
        G("L_Q:")
    if CFG["stamps"]:
        G("v_mov_b32 %s, 0" % vStamp)
    G("v_bfe_u32 %s, %s, 2, 2" % (t2, vL))
    G("s_lshl_b32 %s, %s, 4" % (sTc, sW))
    G("v_add_u32 %s, %s, %s" % (t2, sTc, t2))
    G("v_and_b32 %s, 3, %s" % (t3, vL))
    G("v_lshlrev_b32 %s, 4, %s" % (t3, t3))
    G("s_and_b32 %s, %s, 1" % (sTb, sP))
    if isQ:
        G("s_mul_i32 %s, %s, 448" % (sTa, sP))
        G("s_mul_i32 %s, %s, 192" % (sTc, sTb))
        G("s_add_u32 %s, %s, %s" % (sTa, sTa, sTc))
        G("v_lshl_add_u32 %s, %s, 6, %s" % (t4, t1, t3))
    else:
        G("s_lshl_b32 %s, %s, 7" % (sTa, sP))
        G("s_add_u32 %s, %s, 1024" % (sTa, sTa))
        G("v_and_b32 %s, 1, %s" % (t4, t1))
        G("v_lshl_add_u32 %s, %s, 6, %s" % (t4, t4, t3))
        G("v_lshrrev_b32 %s, 5, %s" % (t0, vL))
        G("v_lshl_add_u32 %s, %s, 10, %s" % (t4, t0, t4))
    G("v_mul_u32_u24 %s, %d, %s" % (vW1[0], pitchA, t2))
    G("v_add3_u32 %s, %s, %s, %s" % (vW1[0], vW1[0], t4, sTa))
    for i in range(1, 4):
        G("v_add_u32 %s, %d, %s" % (vW1[i], 4 * i * pitchA, vW1[0]))
    if isQ:
        G("s_lshl_b32 %s, %s, 6" % (sTc, sCW))
        G("s_add_u32 %s, %s, %s" % (sUA, sTa, sTc))
        G("s_add_u32 %s, %s, 128" % (sBH, sUA))
    else:
        G("s_mul_i32 %s, %s, 448" % (sTa, sP))
        G("s_xor_b32 %s, %s, 1" % (sTc, sTb))
        G("s_lshl_b32 %s, %s, 8" % (sTc, sTc))
        G("s_add_u32 %s, %s, %s" % (sTa, sTa, sTc))
        G("s_lshl_b32 %s, %s, 7" % (sTc, sCW))
        G("s_add_u32 %s, %s, %s" % (sUA, sTa, sTc))
        G("s_add_u32 %s, %s, 64" % (sBH, sTa))
        G("s_and_b32 %s, %s, 0xffffff80" % (sBO, sTa))
    G("s_lshl_b32 %s, %s, 4" % (sTc, sRB))
    G("s_add_u32 %s, %s, %s" % (sTc, sTc, sCG))
    G("s_lshl_b32 %s, %s, 2" % (sTc, sTc))
    G("s_add_u32 %s, %s, %s" % (sTc, sTc, sW))
    G("s_lshl_b32 %s, %s, 11" % (sPoll, sTc))
    G("s_lshl_b32 %s, %s, 3" % (sPollH, sTc))
    G("s_waitcnt lgkmcnt(0)")
    G("s_mov_b32 s0, 1")
    G("s_mov_b32 s1, 0x%x" % (0x10000 if isQ else 0x100))
    if not isQ:
        G("s_or_b32 %s, s2, %s" % (sTc, sW))
        G("s_cmp_lg_u32 %s, 0" % sTc)
        G("s_cbranch_scc1 LK_noinit")
        G("v_lshlrev_b32 v245, 8, %s" % vL, "cond")
        G("v_mov_b32 v246, 0", "cond")
        G("s_mov_b32 %s, 0x%x" % (sTc, WS_CNT), "cond")
        G.l.append(Ins("buffer_store_dword v246, v245, %s, %s offen sc1" % (SRD_WS, sTc), "cond"))
        G("s_add_u32 %s, %s, 0x4000" % (sTc, sTc), "cond")
        G.l.append(Ins("buffer_store_dword v246, v245, %s, %s offen sc1" % (SRD_WS, sTc), "cond"))
        G("s_add_u32 %s, %s, 0x4000" % (sTc, sTc), "cond")
        G.l.append(Ins("buffer_store_dword v246, v245, %s, %s offen sc1" % (SRD_WS, sTc), "cond"))
        G("LK_noinit:")
    GX0, GX1, GW = TMP, TMP + 4, TMP + 8
    G("buffer_load_dwordx4 %s, %s, %s, 0 offen" % (vr(GW, 4), vL16, SRD_GATE), "g")
    G("buffer_load_dwordx4 %s, %s, %s, %s offen" % (vr(GX0, 4), vL16, SRD_X, sPoll), "g")
    G("buffer_load_dwordx4 %s, %s, %s, %s offen offset:1024" % (vr(GX1, 4), vL16, SRD_X, sPoll), "g")
    G("s_load_dwordx16 s[%d:%d], s[36:37], %s" % (STMP, STMP + 15, sUA))
    G("s_load_dwordx16 s[%d:%d], s[36:37], %s" % (STMP + 16, STMP + 31, sBH))

    for c in range(8):
        ev = None if c < 2 else "B%d" % (c - 2)
        for i in range(4):
            pre = chunk_pre(c, pitchA, True) if i == 0 else []
            G.push(pre + ["s_add_u32 m0, %s, %d" % (sM0w, (c % 4) * UNIT + i * 1024)],
                   "buffer_load_dwordx4 %s, %s, %s offen lds" % (vXs[i], SRD_X, sXs), ("c1", c), ev)
            G.push(["s_add_u32 m0, %s, %d" % (sM0w, (4 + c % 4) * UNIT + i * 1024)],
                   "buffer_load_dwordx4 %s, %s, %s offen lds" % (vW1[i], srdA, sWs), ("c1", c), ev)
    G.fill(8)
    if not isQ:
        G("s_or_b32 %s, s2, %s" % (sTc, sW))
        G("s_cmp_lg_u32 %s, 0" % sTc)
        G("s_cbranch_scc1 LK_noinit2")
        G("s_waitcnt vmcnt(11)", "cond")
        G("s_atomic_add s0, s[40:41], 0x0", "cond")
        G("LK_noinit2:")
    G.stamp(0)
    G("s_lshl_b32 %s, %s, 9" % (sUB, sBH))
    G("s_lshl_b32 %s, %s, 9" % (sUA, sUA))
    h, s32 = "v245", "v246"
    G("v_lshrrev_b32 %s, 5, %s" % (h, vL))
    G("v_and_b32 %s, 31, %s" % (s32, vL))
    G("v_lshlrev_b32 %s, 2, %s" % (vS4, s32))
    G("v_mov_b32 %s, 0xffff0000" % vMaskHi)
    if isQ:
        G("v_bfe_u32 %s, %s, 2, 3" % (t0, vL))
        G("s_lshl_b32 %s, %s, 4" % (sTc, sW))
        G("v_add_u32 %s, %s, %s" % (t0, sTc, t0))
        G("v_mul_u32_u24 %s, %d, %s" % (vWp2[0], pitchB, t0))
        G("v_lshl_add_u32 %s, %s, 6, %s" % (t4, h, t3))
        G("s_lshl_b32 %s, %s, 7" % (sTc, sP))
        G("v_add3_u32 %s, %s, %s, %s" % (vWp2[0], vWp2[0], t4, sTc))
        G("v_add_u32 %s, %d, %s" % (vWp2[1], 8 * pitchB, vWp2[0]))
    else:
        G("v_mul_u32_u24 %s, %d, %s" % (vWp2[0], pitchB, t2))
        G("v_lshl_add_u32 %s, %s, 6, %s" % (t4, t1, t3))
        G("v_add3_u32 %s, %s, %s, %s" % (vWp2[0], vWp2[0], t4, sBO))
        for i in range(1, 4):
            G("v_add_u32 %s, %d, %s" % (vWp2[i], 4 * i * pitchB, vWp2[0]))
    G("v_bfe_u32 %s, %s, 1, 3" % (t0, s32))
    G("v_xor_b32 %s, %s, %s" % (t0, t0, h))
    G("v_lshlrev_b32 %s, 4, %s" % (t0, t0))
    G("v_lshl_add_u32 %s, %s, 7, %s" % (t0, s32, t0))
    G("v_add_u32 %s, %s, %s" % (vXr[0][0], sM0w, t0))
    G("v_xor_b32 %s, 0x1000, %s" % (vXr[1][0], vXr[0][0]))
    for R in range(2):
        for t in range(1, 4):
            G("v_xor_b32 %s, %d, %s" % (vXr[R][t], t << 5, vXr[R][0]))
    G("v_bfe_u32 %s, %s, 2, 2" % (t0, vL))
    G("v_lshlrev_b32 %s, 6, %s" % (t4, t0))
    G("v_and_b32 %s, 1, %s" % (t0, t1))
    G("v_lshl_add_u32 %s, %s, 5, %s" % (t4, t0, t4))
    G("v_lshrrev_b32 %s, 1, %s" % (t0, t3))
    G("v_add_u32 %s, %s, %s" % (t4, t4, t0))
    G("v_lshl_add_u32 %s, %s, 11, %s" % (t0, h, t4))
    G("s_lshl_b32 %s, %s, 8" % (sTc, sCW))
    G("s_add_u32 %s, %s, 0x10000" % (sTc, sTc))
    G("v_add_u32 %s, %s, %s" % (vWr, sTc, t0))
    if isQ:
        G("v_lshl_add_u32 %s, %s, 10, %s" % (vP2r[0], h, t4))
        G("s_lshl_b32 %s, %s, 9" % (sTc, sCW))
        G("v_add_u32 %s, %s, %s" % (vP2r[0], sTc, vP2r[0]))
        G("v_add_u32 %s, 0x10000, %s" % (vP2r[1], vP2r[0]))
    else:
        G("s_lshl_b32 %s, %s, 1" % (sTc, sCW))
        G("s_add_u32 %s, %s, %s" % (sTc, sTc, sTb))
        G("s_lshl_b32 %s, %s, 8" % (sTc, sTc))
        G("v_add_u32 %s, %s, %s" % (vP2r[0], sTc, t0))
        G("v_add_u32 %s, 0x10000, %s" % (vP2r[1], vP2r[0]))
        G("s_add_u32 %s, %s, 1" % (sTc, sTb))
        G("s_lshl_b32 %s, %s, 8" % (sTc, sTc))
        G("v_add_u32 %s, %s, %s" % (vP2r[2], sTc, t0))
        G("v_add_u32 %s, 0x10000, %s" % (vP2r[3], vP2r[2]))
    G("v_lshl_add_u32 %s, %s, 8, %s" % (t0, h, t4))
    G("v_add_u32 %s, %s, %s" % (vW2r[0], sM0w, t0))
    G("v_add_u32 %s, 0x10000, %s" % (vW2r[1], vW2r[0]))
    G("v_add_u32 %s, 0x20000, %s" % (vW2r[2], vW2r[0]))
    G("v_bfe_u32 %s, %s, 2, 3" % (t0, vL))
    G("v_lshl_add_u32 %s, %s, 6, %s" % (t4, h, t3))
    G("v_lshl_add_u32 %s, %s, 10, %s" % (t0, t0, t4))
    G("s_lshl_b32 %s, %s, 7" % (sTc, sCT))
    G("v_add_u32 %s, %s, %s" % (vW2s[0], sTc, t0))
    G("v_add_u32 %s, 0x2000, %s" % (vW2s[1], vW2s[0]))
    G("s_lshr_b32 %s, %s, 2" % (sTc, sRB))
    G("s_mul_i32 %s, %s, %d" % (sTc, sTc, A_GRP))
    G("s_and_b32 %s, %s, 3" % (sBH, sRB))
    G("s_lshl_b32 %s, %s, 2" % (sBH, sBH))
    G("s_add_u32 %s, %s, %s" % (sBH, sBH, sW))
    G("s_lshl_b32 %s, %s, 10" % (sBH, sBH))
    G("s_add_u32 %s, %s, %s" % (sTc, sTc, sBH))
    G("v_add_u32 %s, %s, %s" % (vSt[0], sTc, vL16))
    G("v_xor_b32 %s, 0x400, %s" % (vSt[1], vSt[0]))
    G("s_lshr_b32 %s, %s, 3" % (sTc, sR2))
    G("s_mul_i32 %s, %s, %d" % (sTc, sTc, A_GRP))
    G("s_and_b32 %s, %s, 7" % (sBH, sR2))
    G("s_lshl_b32 %s, %s, 11" % (sBH, sBH))
    G("s_add_u32 %s, %s, %s" % (sTc, sTc, sBH))
    G("v_add_u32 %s, %s, %s" % (vA, sTc, vL16))
    G("s_mul_i32 %s, %s, %d" % (sBH, sW, 28 * UNIT))
    G("s_lshl_b32 %s, %s, 17" % (sBO, sW))
    G("s_add_u32 %s, %s, 0x%x" % (sPollH, sPollH, WS_G))
    G("v_mov_b32 %s, %s" % (t0, sPollH))
    G("v_mov_b32 %s, 0x7fffff00" % t4)
    G("v_cmp_eq_u32 vcc, 63, %s" % vL)
    G("v_cndmask_b32 %s, %s, %s, vcc" % (vGoff, t4, t0))
    G("s_lshl_b32 %s, %s, 1" % (sTc, sRB))
    G("s_add_u32 %s, %s, %s" % (sCntGq, sTc, sRW))
    G("s_lshl_b32 %s, %s, 2" % (sCntSig, sCntGq))
    G("s_lshr_b32 %s, %s, 2" % (sPoll, sCG))
    G("s_add_u32 %s, %s, %s" % (sCntSig, sCntSig, sPoll))
    G("s_lshr_b32 %s, %s, 3" % (sPoll, sCG))
    G("s_add_u32 %s, %s, %s" % (sCntGsig, sTc, sPoll))
    G("s_lshl_b32 %s, %s, 1" % (sCntKV, sP))
    G("s_add_u32 %s, %s, %s" % (sCntKV, sCntKV, sCW))
    G("s_lshl_b32 %s, %s, 2" % (sCntH, sR2))
    G("s_add_u32 %s, %s, %s" % (sCntH, sCntH, sW))
    G("s_mov_b32 %s, %s" % (sCntG, sR2))
    for s, b in ((sCntSig, 0), (sCntKV, 128), (sCntGsig, 144), (sCntH, 0), (sCntG, 144), (sCntGq, 144)):
        G("s_lshl_b32 %s, %s, 8" % (s, s))
        G("s_add_u32 %s, %s, 0x%x" % (s, s, WS_CNT + b * 256))
    G("s_waitcnt lgkmcnt(0)")
    for x in bias_lines(BIAS, STMP) + bias_lines(BIAS + 16, STMP + 16):
        G(x)
    if not CFG.get("fine", 0):
        G("s_lshl_b32 %s, %s, 7" % (sTc, sCT))
        G("s_load_dwordx16 s[%d:%d], s[38:39], %s" % (STMP, STMP + 15, sTc))
        G("s_add_u32 %s, %s, 64" % (sTc, sTc))
        G("s_load_dwordx16 s[%d:%d], s[38:39], %s" % (STMP + 16, STMP + 31, sTc))
    G.waitvm("g")
    L = []
    GU = TMP + 12
    XU = TMP + 20
    for i in range(4):
        L.append("v_lshlrev_b32 v%d, 16, v%d" % (GU + 2 * i, GW + i))
        L.append("v_and_b32 v%d, %s, v%d" % (GU + 2 * i + 1, vMaskHi, GW + i))
    for r, GX in enumerate((GX0, GX1)):
        for i in range(4):
            L.append("v_lshlrev_b32 v%d, 16, v%d" % (XU + 2 * i, GX + i))
            L.append("v_and_b32 v%d, %s, v%d" % (XU + 2 * i + 1, vMaskHi, GX + i))
        for i in range(8):
            L.append("v_mul_f32 v%d, v%d, v%d" % (XU + i, XU + i, GU + i))
        for i in range(4):
            L.append("v_cvt_pk_bf16_f32 v%d, v%d, v%d" % (GX + i, XU + 2 * i, XU + 2 * i + 1))
        for i in range(4):
            L.append("v_lshlrev_b32 v%d, 16, v%d" % (XU + 2 * i, GX + i))
            L.append("v_and_b32 v%d, %s, v%d" % (XU + 2 * i + 1, vMaskHi, GX + i))
        for i in range(4):
            L.append("v_add_f32 v%d, v%d, v%d" % (XU + i, XU + i, XU + 4 + i))
        L.append("v_add_f32 v%d, v%d, v%d" % (XU, XU, XU + 2))
        L.append("v_add_f32 v%d, v%d, v%d" % (XU + 1, XU + 1, XU + 3))
        L.append("v_add_f32 v%d, v%d, v%d" % (vGv + r, XU, XU + 1))
    for mod in ("row_shr:1 row_mask:0xf", "row_shr:2 row_mask:0xf", "row_shr:4 row_mask:0xf", "row_shr:8 row_mask:0xf",
                "row_bcast:15 row_mask:0xa", "row_bcast:31 row_mask:0xc"):
        for r in range(2):
            L.append("v_add_f32_dpp v%d, v%d, v%d %s bank_mask:0xf" % (vGv + r, vGv + r, vGv + r, mod))
    L.append("v_cvt_pk_bf16_f32 v%d, v%d, v%d" % (XU, vGv, vGv + 1))
    L.append("v_lshlrev_b32 v%d, 16, v%d" % (vGv, XU))
    L.append("v_and_b32 v%d, %s, v%d" % (vGv + 1, vMaskHi, XU))
    for r in range(2):
        L.append("v_mul_f32 v%d, 0xbfb8aa3b, v%d" % (vGv + r, vGv + r))
    for r in range(2):
        L.append("v_exp_f32 v%d, v%d" % (vGv + r, vGv + r))
    for r in range(2):
        L.append("v_add_f32 v%d, 1.0, v%d" % (vGv + r, vGv + r))
    for r in range(2):
        L.append("v_rcp_f32 v%d, v%d" % (vGv + r, vGv + r))
    L.append("v_cvt_pk_bf16_f32 v%d, v%d, v%d" % (XU, vGv, vGv + 1))
    L.append("v_lshlrev_b32 v%d, 16, v%d" % (vGv, XU))
    L.append("v_and_b32 v%d, %s, v%d" % (vGv + 1, vMaskHi, XU))
    G.sprinkle(L, 12)

    if isQ:
        p2unit = [0, 0, 4, 4, 1, 1, 5, 5]
        for c in range(8):
            ev = "B6" if c < 4 else "B7"
            for i in range(2):
                pre = chunk_pre(c, pitchB, False) if i == 0 else []
                G.push(pre + ["s_lshr_b32 m0, %s, 1" % sM0w, "s_add_u32 m0, m0, %d" % (p2unit[c] * UNIT + (c & 1) * 8192 + i * 1024)],
                       "buffer_load_dwordx4 %s, %s, %s offen lds" % (vWp2[i], srdB, sWs), ("c2", c), ev)
        ulist = [(8, None), (2, "B8"), (6, "B8"), (3, "B9"), (7, "B9"), (0, "C2"), (4, "C3"), (1, "C4"), (5, "C5")]
    else:
        p2unit = [0, 4, 1, 5, 2, 6, 3, 7]
        for c in range(8):
            ev = "B%d" % (6 + c // 2)
            for i in range(4):
                pre = chunk_pre(c, pitchB, False) if i == 0 else []
                G.push(pre + ["s_add_u32 m0, %s, %d" % (sM0w, p2unit[c] * UNIT + i * 1024)],
                       "buffer_load_dwordx4 %s, %s, %s offen lds" % (vWp2[i], srdB, sWs), ("c2", c), ev)
        ulist = [(8, None)] + [(p2unit[c], "C%d" % (c + 2)) for c in range(8)]

    steps = [("h", u) for u in list(range(8)) + list(range(20, 28)) + list(range(8, 20))] + [("o", i) for i in range(8)]

    def push_w2(s, ev):
        k = (s % 18) // 2
        kind, u = steps[s]
        for j4 in range(2):
            pre = ["s_add_u32 %s, %s, %d" % (sWs, sBH if kind == "h" else sBO, u * UNIT)] if j4 == 0 else []
            G.push(pre + ["s_add_u32 m0, %s, %d" % (sM0w, ulist[k][0] * UNIT + (s & 1) * 2048 + j4 * 1024)],
                   "buffer_load_dwordx4 %s, %s, %s offen lds" % (vW2s[j4], SRD_W2 if kind == "h" else SRD_WO, sWs), ("w2", s), ev)
    for s in range(18):
        push_w2(s, ulist[s // 2][1])

    def reads1(g):
        c, t = g >> 2, g & 3
        fb = FR + (g % 3) * 8
        out = []
        for R in range(2):
            out.append(("ds_read_b128 %s, %s offset:%d" % (ar((g * 2 + R) * 4, 4), vXr[R][t], (c % 4) * UNIT), ("r1", g)))
        for tl in range(2):
            for j4 in range(2):
                out.append(("ds_read_b64_tr_b16 %s, %s offset:%d" % (vr(fb + tl * 4 + j4 * 2, 2), vWr, (c % 4) * UNIT + t * 4096 + j4 * 1024 + tl * 512), ("r1", g)))
        return out

    G.stamp(1)
    G.need(("c1", 0))
    G.barrier("B0")
    G.stamp(2)
    for g in range(2):
        for x in reads1(g):
            G(*x)
    for g in range(32):
        if (g + 2) % 4 == 0:
            c = (g + 2) // 4
            G.fstamp(1, 2 * c - 2)
            if c < 8:
                G.need(("c1", c))
            G.barrier("B%d" % c)
            G.fstamp(1, 2 * c - 1)
        if g == 24:
            G.init_issue()
        rd = reads1(g + 2) if g + 2 < 32 else []
        G.waitlg(("r1", g))
        fb = FR + (g % 3) * 8
        n = 0
        for tl in range(2):
            for R in range(2):
                d = vr(ACC + (tl * 2 + R) * 16, 16)
                x = ar((g * 2 + R) * 4, 4)
                wv = vr(fb + tl * 4, 4)
                cin = d if g > 0 else (vr(BIAS + tl * 16, 16) if isQ else "0")
                if isQ:
                    G("v_mfma_f32_32x32x16_bf16 %s, %s, %s, %s" % (d, wv, x, cin))
                else:
                    G("v_mfma_f32_32x32x16_bf16 %s, %s, %s, %s" % (d, x, wv, cin))
                for y in rd[2 * n:2 * n + 2]:
                    G(*y)
                if n in (1, 3):
                    G.fill(1)
                n += 1
    G.barrier("B9")
    G.stamp(3)

    def relu2_store(base, voff, soff, tag):
        out = []
        for i in range(16):
            out.append("v_max_f32 v%d, 0, v%d" % (base + i, base + i))
        for i in range(8):
            out.append("v_pk_mul_f32 %s, %s, %s" % (vr(base + 2 * i, 2), vr(base + 2 * i, 2), vr(base + 2 * i, 2)))
        for i in range(8):
            out.append("v_cvt_pk_bf16_f32 v%d, v%d, v%d" % (base + i, base + 2 * i, base + 2 * i + 1))
        out.append(("buffer_store_dwordx4 %s, %s, %s, %s offen sc1" % (vr(base, 4), voff, SRD_WS, soff), tag))
        out.append("s_add_u32 %s, %s, %d" % (sTb, soff, UNIT))
        out.append(("buffer_store_dwordx4 %s, %s, %s, %s offen sc1" % (vr(base + 4, 4), voff, SRD_WS, sTb), tag))
        return out

    def phi_pack(base, tmp):
        out = []
        for i in range(16):
            out.append("v_mul_f32 v%d, 0x3fb8aa3b, v%d" % (tmp + i, base + i))
        for i in range(16):
            out.append("v_exp_f32_e64 v%d, v%d clamp" % (tmp + i, tmp + i))
            out.append("v_max_f32 v%d, 0x358637bd, v%d" % (base + i, base + i))
        for i in range(8):
            out.append("v_pk_add_f32 %s, %s, %s" % (vr(base + 2 * i, 2), vr(base + 2 * i, 2), vr(tmp + 2 * i, 2)))
        for i in range(8):
            out.append("v_cvt_pk_bf16_f32 v%d, v%d, v%d" % (base + i, base + 2 * i, base + 2 * i + 1))
        return out

    gstore = ("buffer_store_dwordx2 %s, %s, %s, 0 offen sc1" % (vr(vGv, 2), vGoff, SRD_WS), "pub1")

    if isQ:
        L = [gstore]
        for tl in range(2):
            for R in range(2):
                L += relu2_store(ACC + (tl * 2 + R) * 16, vSt[R], sUA if tl == 0 else sUB, "pub1")
        G.sprinkle(L, 16)
    else:
        L = []
        for R in range(2):
            L += phi_pack(ACC + R * 16, TMP)
        for R in range(2):
            b = ACC + 32 + R * 16
            for i in range(8):
                L.append("v_cvt_pk_bf16_f32 v%d, v%d, v%d" % (b + i, b + 2 * i, b + 2 * i + 1))
        ONES = FR
        for i in range(4):
            L.append("v_mov_b32 v%d, 0x3f803f80" % (ONES + i))
        KD, ZD = TMP, TMP + 16
        n = 0
        for R in range(2):
            for kk in range(2):
                pk = vr(ACC + R * 16 + kk * 4, 4)
                vv = vr(ACC + 32 + R * 16 + kk * 4, 4)
                L.append("v_mfma_f32_32x32x16_bf16 %s, %s, %s, %s" % (vr(KD, 16), pk, vv, vr(KD, 16) if n else "0"))
                n += 1
        n = 0
        for R in range(2):
            for kk in range(2):
                pk = vr(ACC + R * 16 + kk * 4, 4)
                L.append("v_mfma_f32_32x32x16_bf16 %s, %s, %s, %s" % (vr(ZD, 16), vr(ONES, 4), pk, vr(ZD, 16) if n else "0"))
                n += 1
        G.sprinkle(L, 14)
        G("v_and_b32 %s, 16, %s" % (t0, vL))
        G("v_cmp_eq_u32 vcc, 0, %s" % t0)
        G("s_lshl_b32 %s, %s, 10" % (sTc, sW))
        G("s_add_u32 %s, %s, %d" % (sTc, sTc, MISC))
        G("v_add_u32 %s, %s, %s" % (t0, sTc, vL16))
        G("v_xor_b32 %s, 0x800, %s" % (t1, t0))
        G("s_lshl_b32 %s, %s, 8" % (sTc, sW))
        G("s_add_u32 %s, %s, %d" % (sTc, sTc, MISC + 4096))
        G("v_lshl_add_u32 %s, %s, 2, %s" % (t2, vL, sTc))
        G("v_xor_b32 %s, 0x200, %s" % (t3, t2))
        for i in range(8):
            G("v_cndmask_b32 v%d, v%d, v%d, vcc" % (KD + i, KD + 8 + i, KD + i))
        G("s_cmp_eq_u32 %s, 0" % sRW)
        G("s_cbranch_scc1 LK_noswap")
        for i in range(4):
            G("v_swap_b32 v%d, v%d" % (KD + i, KD + 4 + i), "cond")
        G("LK_noswap:")
        G("ds_write_b128 %s, %s" % (t0, vr(KD + 4, 4)), "kx")
        G("ds_write_b32 %s, v%d" % (t2, ZD), "kx")
        G.fill(1)
        G.waitlg("kx")
        G.barrier("BK")
        G("ds_read_b128 %s, %s" % (vr(KD + 4, 4), t1), "kr")
        G("ds_read_b32 v%d, %s" % (ZD + 1, t3), "kr")
        G("s_lshl_b32 %s, %s, 1" % (sTc, sP))
        G("s_add_u32 %s, %s, %s" % (sTc, sTc, sCW))
        G("s_lshl_b32 %s, %s, 4" % (sTc, sTc))
        G("s_add_u32 %s, %s, %s" % (sTc, sTc, sRB))
        G("s_lshl_b32 %s, %s, 1" % (sTb, sTc))
        G("s_add_u32 %s, %s, %s" % (sTb, sTb, sRW))
        G("s_lshl_b32 %s, %s, 10" % (sTb, sTb))
        G("s_add_u32 %s, %s, 0x%x" % (sTb, sTb, WS_KVP))
        G("s_lshl_b32 %s, %s, 7" % (sTc, sTc))
        G("s_add_u32 %s, %s, 0x%x" % (sTc, sTc, WS_Z))
        G.waitlg("kr")
        for i in range(2):
            G("v_pk_add_f32 %s, %s, %s" % (vr(KD + 2 * i, 2), vr(KD + 2 * i, 2), vr(KD + 4 + 2 * i, 2)))
        G("v_add_f32 v%d, v%d, v%d" % (ZD, ZD, ZD + 1))
        G("buffer_store_dwordx4 %s, %s, %s, %s offen sc1" % (vr(KD, 4), vL16, SRD_WS, sTb), "pub1")
        G("buffer_store_dword v%d, %s, %s, %s offen sc1" % (ZD, vS4, SRD_WS, sTc), "pub1")
        G(*gstore)
    G.stamp(4)

    def pub1_signal():
        G.waitvm("pub1")
        G.init_gate()
        G.signal(sCntGsig, 1)
        if isQ:
            G.signal(sCntSig, 1)
        else:
            G.signal(sCntKV, 1)
        G.stamp(5)

    def reads2(g):
        c, t = g >> 2, g & 3
        fb = FR + (g % 3) * 8
        u = p2unit[c]
        hi = 1 if u >= 4 else 0
        out = []
        if isQ:
            for j4 in range(2):
                out.append(("ds_read_b64_tr_b16 %s, %s offset:%d" % (vr(fb + j4 * 2, 2), vP2r[hi], (u % 4) * UNIT + (c & 1) * 8192 + t * 2048 + j4 * 256), ("r2", g)))
        else:
            for tl in range(2):
                for j4 in range(2):
                    out.append(("ds_read_b64_tr_b16 %s, %s offset:%d" % (vr(fb + tl * 4 + j4 * 2, 2), vP2r[tl * 2 + hi], (u % 4) * UNIT + t * 4096 + j4 * 1024), ("r2", g)))
        return out

    per = 8 if isQ else 4
    G.need(*[("c2", c) for c in range(per // 4)])
    G.barrier("C0")
    for g in range(2):
        for x in reads2(g):
            G(*x)
    sig_step = CFG["pubdelay"] * 4 + 2 if not isQ else CFG["pubdelay"] * 8 - 2
    for g in range(32):
        if (g + 2) % per == 0:
            i = (g + 2) // per
            if i * per < 32:
                G.need(*[("c2", c) for c in range(i * per // 4, (i + 1) * per // 4)])
            G.barrier("C%d" % i)
        if g == sig_step:
            pub1_signal()
        rd = reads2(g + 2) if g + 2 < 32 else []
        G.waitlg(("r2", g))
        fb = FR + (g % 3) * 8
        jobs = [(0, 0), (0, 1)] if isQ else [(0, 0), (0, 1), (1, 0)]
        for n, (tl, R) in enumerate(jobs):
            d = vr(ACC2 + n * 16, 16)
            cin = d if g > 0 else ("0" if isQ else vr(BIAS + tl * 16, 16))
            G("v_mfma_f32_32x32x16_bf16 %s, %s, %s, %s" % (d, vr(fb + tl * 4, 4), ar((g * 2 + R) * 4, 4), cin))
            for y in rd[2 * n:2 * n + 2]:
                G(*y)
            if n == len(jobs) - 1 or (not isQ and n == 0 and g % 3 == 0):
                G.fill(1)
    G.barrier("C%d" % (32 // per + 1))
    G.stamp(6)

    def w2reads(s, dst):
        k = (s % 18) // 2
        u = ulist[k][0]
        out = []
        for T in range(2):
            for j4 in range(2):
                out.append(("ds_read_b64_tr_b16 %s, %s offset:%d" % (dst(T * 4 + j4 * 2), vW2r[u // 4], (u % 4) * UNIT + (s & 1) * 2048 + j4 * 1024 + T * 512), ("wr", s)))
        return out

    drained = [0]

    def drain(k):
        G.need(("w2", 2 * k), ("w2", 2 * k + 1))
        for s in (2 * k, 2 * k + 1):
            for x in w2reads(s, lambda o, s=s: ar(s * 8 + o, 2)):
                G(*x)
        if k > 0:
            release(k - 1)

    def release(k):
        G.waitlg(("wr", 2 * k + 1))
        G.ev.add("D%d" % k)

    for s in range(18, 36):
        push_w2(s, "D%d" % ((s - 18) // 2))

    def b2_setup():
        l1, l2 = G.lab("bz"), G.lab("bd")
        G("s_cmp_lg_u32 %s, 0" % sW)
        G("s_cbranch_scc1 %s" % l1)
        for x in bias_lines(BIAS, STMP) + bias_lines(BIAS + 16, STMP + 16):
            G(x, "cond")
        G("s_branch %s" % l2, "cond")
        G("%s:" % l1)
        for i in range(32):
            G("v_mov_b32 v%d, 0" % (BIAS + i), "cond")
        G("%s:" % l2)

    if not isQ:
        L = []
        for n, (R, so) in enumerate(((0, sUA), (1, sUA), (0, sUB))):
            L += relu2_store(ACC2 + n * 16, vSt[R], so, "pub2")
        G.sprinkle(L, 16)
        G.stamp(7)
        G.poll_issue(sPollH, sCntH)
        G.poll_issue(sPoll, sCntG)
        for k in range(9):
            drain(k)
            G.fill(4)
            if k == 3:
                b2_setup()
            if k == 5:
                G.waitvm("pub2")
                G.signal(sCntSig, 0x100)
                G.stamp(8)
        release(8)
    else:
        L = []
        for R in range(2):
            L += phi_pack(ACC2 + R * 16, TMP)
        G.poll_issue(sPoll, sCntGq)
        G.sprinkle(L, 14)
        G.gate(sPoll, sCntGq, 0, 32)
        G.poll_issue(sPoll, sCntKV)
        GQ = TMP + 40
        G("s_lshl_b32 %s, %s, 2" % (sTc, sRB))
        G("s_add_u32 %s, %s, %s" % (sTc, sTc, sW))
        G("s_lshl_b32 %s, %s, 7" % (sTc, sTc))
        G("s_add_u32 %s, %s, 0x%x" % (sTc, sTc, WS_G))
        G("buffer_load_dword v%d, %s, %s, %s offen sc1" % (GQ, vS4, SRD_WS, sTc), "gq")
        G("s_xor_b32 %s, %s, 0x80" % (sTc, sTc))
        G("buffer_load_dword v%d, %s, %s, %s offen sc1" % (GQ + 1, vS4, SRD_WS, sTc), "gq")
        for k in range(4):
            drain(k)
            G.fill(4)
        b2_setup()
        G.stamp(7)
        G.gate(sPoll, sCntKV, 0, 32)
        G.stamp(8)
        PK = ACC
        ZL = TMP
        G("s_lshl_b32 %s, %s, 1" % (sTc, sP))
        G("s_add_u32 %s, %s, %s" % (sTc, sTc, sCW))
        G("s_lshl_b32 %s, %s, 1" % (sTc, sTc))
        G("s_add_u32 %s, %s, %s" % (sTc, sTc, sRW))
        G("s_lshl_b32 %s, %s, 14" % (sTb, sTc))
        G("s_add_u32 %s, %s, 0x%x" % (sTb, sTb, WS_KVP))
        G("s_lshl_b32 %s, %s, 10" % (sTc, sTc))
        G("s_add_u32 %s, %s, 0x%x" % (sTc, sTc, WS_Z))
        G("v_lshlrev_b32 %s, 2, %s" % (t4, vL))
        for i in range(4):
            G("buffer_load_dword v%d, %s, %s, %s offen offset:%d sc1" % (ZL + i, t4, SRD_WS, sTc, i * 256), "kvp")
        for i in range(16):
            if i and i % 4 == 0:
                G("s_add_u32 %s, %s, 4096" % (sTb, sTb))
            G("buffer_load_dwordx4 %s, %s, %s, %s offen offset:%d sc1" % (vr(PK + i * 4, 4), vL16, SRD_WS, sTb, (i % 4) * 1024), "kvp")
        for k in range(4, 7):
            drain(k)
            G.fill(2)
        G("s_lshl_b32 %s, %s, 11" % (sTc, sW))
        G("s_add_u32 %s, %s, %d" % (sTc, sTc, MISC))
        G("v_add_u32 %s, %s, %s" % (t0, sTc, vL16))
        G("v_xor_b32 %s, 0x1000, %s" % (t1, t0))
        G("s_lshl_b32 %s, %s, 8" % (sTc, sW))
        G("s_add_u32 %s, %s, %d" % (sTc, sTc, MISC + 8192))
        G("v_add_u32 %s, %s, %s" % (t2, sTc, t4))
        G("v_and_b32 %s, 16, %s" % (t3, vL))
        G("v_cmp_eq_u32 vcc, 0, %s" % t3)
        G("v_xor_b32 %s, 16, %s" % (t3, t3))
        G("v_lshrrev_b32 %s, 5, %s" % (t4, vL))
        G("v_lshl_add_u32 %s, %s, 2, %s" % (t3, t4, t3))
        G("s_lshl_b32 %s, %s, 8" % (sTc, sCW))
        G("s_add_u32 %s, %s, %d" % (sTc, sTc, MISC + 8192))
        G("v_lshl_add_u32 %s, %s, 2, %s" % (t3, t3, sTc))
        G.waitvm("kvp")
        L = []
        L.append("v_add_f32 v%d, v%d, v%d" % (ZL, ZL, ZL + 1))
        L.append("v_add_f32 v%d, v%d, v%d" % (ZL + 2, ZL + 2, ZL + 3))
        for st in (32, 16, 8):
            for i in range(0, st, 2):
                L.append("v_pk_add_f32 %s, %s, %s" % (vr(PK + i, 2), vr(PK + i, 2), vr(PK + st + i, 2)))
        L.append("v_add_f32 v%d, v%d, v%d" % (ZL, ZL, ZL + 2))
        L.append("v_mov_b32 v%d, v%d" % (ZL + 1, ZL))
        L.append("v_permlane32_swap_b32 v%d, v%d" % (ZL, ZL + 1))
        L.append("v_add_f32 v%d, v%d, v%d" % (ZL, ZL, ZL + 1))
        L.append(("ds_write_b128 %s, %s" % (t0, vr(PK, 4)), "qx"))
        L.append(("ds_write_b128 %s, %s offset:1024" % (t0, vr(PK + 4, 4)), "qx"))
        L.append(("ds_write_b32 %s, v%d" % (t2, ZL), "qx"))
        G.sprinkle(L, 12)
        G.waitlg("qx")
        G.barrier("BQ")
        G("ds_read_b128 %s, %s" % (vr(PK + 8, 4), t1), "qr")
        G("ds_read_b128 %s, %s offset:1024" % (vr(PK + 12, 4), t1), "qr")
        G("ds_read_b128 %s, %s" % (vr(PK + 16, 4), t3), "qr")
        G("ds_read_b128 %s, %s offset:32" % (vr(PK + 20, 4), t3), "qr")
        G("ds_read_b128 %s, %s offset:512" % (vr(PK + 24, 4), t3), "qr")
        G("ds_read_b128 %s, %s offset:544" % (vr(PK + 28, 4), t3), "qr")
        G.fill(1)
        G("s_lshl_b32 %s, %s, 1" % (sTb, sP))
        G("s_add_u32 %s, %s, %s" % (sTb, sTb, sCW))
        G("s_lshl_b32 %s, %s, 15" % (sTb, sTb))
        G("s_add_u32 %s, %s, %d" % (sUA, sTb, 112 * UNIT))
        G("s_add_u32 %s, %s, %d" % (sUB, sTb, 113 * UNIT))
        G.waitlg("qr")
        for i in range(0, 8, 2):
            G("v_pk_add_f32 %s, %s, %s" % (vr(PK + i, 2), vr(PK + i, 2), vr(PK + 8 + i, 2)))
            G("v_pk_add_f32 %s, %s, %s" % (vr(PK + 16 + i, 2), vr(PK + 16 + i, 2), vr(PK + 24 + i, 2)))
        for i in range(4):
            G("v_cvt_pk_bf16_f32 v%d, v%d, v%d" % (PK + i, PK + 2 * i, PK + 2 * i + 1))
            G("v_cvt_pk_bf16_f32 v%d, v%d, v%d" % (PK + 16 + i, PK + 16 + 2 * i, PK + 16 + 2 * i + 1))
        A0, A1 = FR, FR + 4
        for i in range(4):
            G("v_cndmask_b32 v%d, v%d, v%d, vcc" % (A0 + i, PK + 16 + i, PK + i))
            G("v_cndmask_b32 v%d, v%d, v%d, vcc" % (A1 + i, PK + i, PK + 16 + i))
        for R in range(2):
            for hd in range(2):
                G("v_mfma_f32_32x32x16_bf16 %s, %s, %s, 0" % (vr(ACC + (R * 2 + hd) * 16, 16), vr(A1 if hd else A0, 4), vr(ACC2 + R * 16 + hd * 4, 4)))
        G.fill(2)
        G.waitvm("gq")
        L = []
        for R in range(2):
            for hd in range(2):
                b = ACC + (R * 2 + hd) * 16
                num, den = (b + 8, b) if hd else (b, b + 8)
                L.append("v_add_f32 v%d, 0x358637bd, v%d" % (den, den))
                L.append("v_rcp_f32 v%d, v%d" % (den, den))
                L.append("v_mul_f32 v%d, v%d, v%d" % (den, den, GQ + R))
                for i in range(4):
                    L.append("v_pk_mul_f32 %s, %s, %s op_sel_hi:[1,0]" % (vr(num + 2 * i, 2), vr(num + 2 * i, 2), vr(den, 2)))
                for i in range(4):
                    L.append("v_cvt_pk_bf16_f32 v%d, v%d, v%d" % (num + i, num + 2 * i, num + 2 * i + 1))
                L.append(("buffer_store_dwordx4 %s, %s, %s, %s offen sc1" % (vr(num, 4), vSt[R], SRD_WS, sUB if hd else sUA), "pub2"))
        G.sprinkle(L, 100)
        G.stamp(9)
        G.poll_issue(sPollH, sCntH)
        G.poll_issue(sPoll, sCntG)
        for k in range(7, 9):
            drain(k)
            G.fill(4)
        release(8)
        G.fill(8)
        G.waitvm("pub2")
        G.signal(sCntSig, 0x10000)

    NRING = 28
    RING = 144

    def aload(s):
        kind, u = steps[s]
        G("s_add_u32 %s, %s, %d" % (sTb, sBH if kind == "h" else sBO, (u if kind == "h" else 112 + u) * UNIT))
        for R in range(2):
            G("buffer_load_dwordx4 %s, %s, %s, %s offen offset:%d sc1" % (ar(RING + ((2 * s + R) % NRING) * 4, 4), vA, SRD_WS, sTb, R * 1024), ("a", s))

    AH = CFG["ahead"]
    assert 2 * (AH + 1) <= NRING
    for s in range(18, 18 + 2 * CFG["r2_early"]):
        G.flush_until(("w2", s))
    G.stamp(10)
    G.gate(sPoll, sCntG, 0, 32)
    G.gate(sPollH, sCntH, 0, 4, pending=False)
    G.stamp(11)
    GO = TMP + 40
    G("s_lshl_b32 %s, %s, 8" % (sTc, sR2))
    G("s_add_u32 %s, %s, 0x%x" % (sTc, sTc, WS_G))
    G("buffer_load_dword v%d, %s, %s, %s offen sc1" % (GO, vS4, SRD_WS, sTc), "go")
    G("buffer_load_dword v%d, %s, %s, %s offen offset:128 sc1" % (GO + 2, vS4, SRD_WS, sTc), "go")

    def issue_a(s):
        if s >= 36:
            return
        if s in (12, 24):
            G.poll_issue(sPollH, sCntH)
        if s == 16:
            G.gate(sPollH, sCntH, 8, 4)
            G.stamp(12)
        if s == 28:
            G.gate(sPollH, sCntH, 16, 4)
            G.stamp(13)
        aload(s)

    for s in range(AH):
        issue_a(s)
        G.fill(2)
    vRW = [TMP + i for i in range(8)]
    vRD = [TMP + 8 + i for i in range(4)]
    vO = TMP + 12
    G("v_and_b32 %s, 15, %s" % (t0, vL))
    G("v_lshrrev_b32 %s, 5, %s" % (t1, vL))
    G("v_xor_b32 %s, %s, %s" % (t1, t1, t0))
    G("v_lshlrev_b32 %s, 4, %s" % (t1, t1))
    G("v_lshl_add_u32 %s, %s, 8, %s" % (t1, t0, t1))
    G("v_bfe_u32 %s, %s, 4, 1" % (t0, vL))
    G("v_lshl_add_u32 %s, %s, 14, %s" % (t1, t0, t1))
    G("v_add_u32 v%d, %s, %s" % (vRW[0], sM0w, t1))
    for i in range(1, 8):
        G("v_xor_b32 v%d, %d, v%d" % (vRW[i], i << 5, vRW[0]))
    G("v_lshrrev_b32 %s, 3, %s" % (t0, vL))
    G("v_and_b32 %s, 7, %s" % (t1, vL))
    G("v_lshlrev_b32 %s, 1, %s" % (t2, t1))
    G("v_xor_b32 %s, %s, %s" % (t2, t2, t0))
    G("v_lshlrev_b32 %s, 4, %s" % (t2, t2))
    G("v_lshl_add_u32 %s, %s, 8, %s" % (t2, t0, t2))
    G("s_lshl_b32 %s, %s, 14" % (sTc, sW))
    G("v_add_u32 v%d, %s, %s" % (vRD[0], sTc, t2))
    G("v_xor_b32 v%d, 16, v%d" % (vRD[1], vRD[0]))
    G("v_xor_b32 v%d, 0x880, v%d" % (vRD[2], vRD[0]))
    G("v_xor_b32 v%d, 0x890, v%d" % (vRD[3], vRD[0]))
    G("v_lshlrev_b32 %s, 4, %s" % (t1, t1))
    G("v_lshl_add_u32 v%d, %s, 10, %s" % (vO, t0, t1))

    def jit(s):
        if 18 <= s < 36:
            G.need(("w2", s))
            fb = FR + (s % 3) * 8
            return w2reads(s, lambda o: vr(fb + o, 2))
        return []

    for s in range(36):
        if s == 28:
            G.waitvm("go")
            for R in range(2):
                G("v_sub_f32 v%d, 1.0, v%d" % (GO + 2 * R, GO + 2 * R))
            G("v_cvt_pk_bf16_f32 v%d, v%d, v%d" % (GO + 1, GO, GO + 2))
            G("v_lshlrev_b32 v%d, 16, v%d" % (GO, GO + 1))
            G("v_and_b32 v%d, %s, v%d" % (GO + 2, vMaskHi, GO + 1))
            for T in range(2):
                for R in range(2):
                    b = ACC + (T * 2 + R) * 16
                    for i in range(8):
                        G("v_pk_mul_f32 %s, %s, %s op_sel_hi:[1,0]" % (vr(b + 2 * i, 2), vr(b + 2 * i, 2), vr(GO + 2 * R, 2)))
        rd = jit(s + 2)
        G.waitvm(("a", s))
        if s >= 18:
            G.waitlg(("wr", s))
        n = 0
        for T in range(2):
            for R in range(2):
                d = vr(ACC + (T * 2 + R) * 16, 16)
                wv = ar(s * 8 + T * 4, 4) if s < 18 else vr(FR + (s % 3) * 8 + T * 4, 4)
                cin = d if s > 0 else vr(BIAS + T * 16, 16)
                G("v_mfma_f32_32x32x16_bf16 %s, %s, %s, %s" % (d, wv, ar(RING + ((2 * s + R) % NRING) * 4, 4), cin))
                for y in rd[2 * n:2 * n + 2]:
                    G(*y)
                if n == 2:
                    issue_a(s + AH)
                if n == 3:
                    G.fill(2)
                n += 1
    assert not G.q
    G.stamp(14)
    for R in range(2):
        for T in range(2):
            for m in range(4):
                G("ds_write_b128 v%d, %s offset:%d" % (vRW[T * 4 + m], vr(ACC + (T * 2 + R) * 16 + 4 * m, 4), R * 32768), "rw")
    G("s_lshl_b32 %s, %s, 2" % (sTc, sR2))
    G("s_add_u32 %s, %s, %s" % (sTc, sTc, sW))
    G("s_lshl_b32 %s, %s, 14" % (sTc, sTc))
    G("s_lshl_b32 %s, %s, 7" % (sTb, sCT))
    G("s_add_u32 %s, %s, %s" % (sTc, sTc, sTb))
    G("s_add_u32 %s, %s, 0x2000" % (sTb, sTc))
    G.waitlg("rw")
    G.barrier("BF")
    RD = ACC2
    for ps in range(2):
        for src in range(4):
            for e in range(2):
                G("ds_read_b128 %s, v%d offset:%d" % (vr(RD + ps * 32 + src * 8 + e * 4, 4), vRD[ps * 2 + e], src * 4096), ("rd", ps))
    for ps in range(2):
        b = RD + ps * 32
        G.waitlg(("rd", ps))
        for i in range(0, 8, 2):
            G("v_pk_add_f32 %s, %s, %s" % (vr(b + i, 2), vr(b + i, 2), vr(b + 8 + i, 2)))
            G("v_pk_add_f32 %s, %s, %s" % (vr(b + 16 + i, 2), vr(b + 16 + i, 2), vr(b + 24 + i, 2)))
        for i in range(0, 8, 2):
            G("v_pk_add_f32 %s, %s, %s" % (vr(b + i, 2), vr(b + i, 2), vr(b + 16 + i, 2)))
        for i in range(4):
            G("v_cvt_pk_bf16_f32 v%d, v%d, v%d" % (b + i, b + 2 * i, b + 2 * i + 1))
        G("buffer_store_dwordx4 %s, v%d, %s, %s offen" % (vr(b, 4), vO, SRD_OUT, sTb if ps else sTc), "out")
    if CFG["stamps"]:
        G.waitvm("out")
        G.stamp(15)
        G("v_writelane_b32 %s, %s, 16" % (vStamp, sTO))
        if CFG.get("fine", 0):
            for i in range(16):
                G("v_writelane_b32 %s, s%d, %d" % (vStamp, STMP + 2 * i, 48 + i))
        G("s_lshl_b32 %s, %s, 4" % (sTc, sRB))
        G("s_add_u32 %s, %s, %s" % (sTc, sTc, sCG))
        G("s_lshl_b32 %s, %s, 2" % (sTc, sTc))
        G("s_add_u32 %s, %s, %s" % (sTc, sTc, sW))
        G("s_lshl_b32 %s, %s, 8" % (sTc, sTc))
        G("s_add_u32 %s, %s, 0x%x" % (sTc, sTc, WS_DBG))
        G("v_lshlrev_b32 %s, 2, %s" % (t0, vL))
        G("buffer_store_dword %s, %s, %s, %s offen" % (vStamp, t0, SRD_WS, sTc))
    G("s_endpgm")
    return G


def main():
    hdr = open("cdna_kernels/%s.s.ref" % NAME).read().split("\n")
    head = []
    for line in hdr:
        if line.startswith("; @launch"):
            head.append("; @launch grid=(256,1,1) block=(256,1,1) lds=163840")
        elif line.startswith(";"):
            head.append(line)
        else:
            break
    P = prologue()
    body = []
    K = build(False)
    Q = build(True)
    kl = pad_hazards(resolve(P.l + K.l))
    ql = pad_hazards(resolve(P.l + Q.l))
    idx = [i for i, x in enumerate(ql) if x.text == "L_Q:"][0]
    ql = ql[idx:]
    s = "\n".join(head) + "\n"
    s += '.amdgcn_target "amdgcn-amd-amdhsa--gfx950"\n.text\n.globl %s_kernel\n.p2align 8\n.type %s_kernel,@function\n%s_kernel:\n' % (NAME, NAME, NAME)
    s += render(kl) + "\n.p2align 6\n" + render(ql) + "\nL_end:\n    s_endpgm\n"
    s += """.section .rodata,"a"
.p2align 6
.amdhsa_kernel %s_kernel
  .amdhsa_next_free_vgpr 512
  .amdhsa_next_free_sgpr 102
  .amdhsa_accum_offset 256
  .amdhsa_group_segment_fixed_size 0
  .amdhsa_kernarg_size 96
  .amdhsa_user_sgpr_count 2
  .amdhsa_user_sgpr_kernarg_segment_ptr 1
  .amdhsa_system_sgpr_workgroup_id_x 1
  .amdhsa_float_denorm_mode_32 3
  .amdhsa_float_denorm_mode_16_64 3
.end_amdhsa_kernel
""" % NAME
    open(sys.argv[1], "w").write(s)
    print("wrote", sys.argv[1], "instr K", len(kl), "Q", len(ql))


if __name__ == "__main__":
    main()
```

```python
import sys
from asmdsl import *

NAME = "gated_mix__linear_attn_block__dense_activation_squared_relu__prompt"

CFG = dict(rate1=60, dist=2, qpre=8, ev=12, stamps=0, rot=2, r2_early=2, r2_earlyQ=6, ahead=8, pf=2, ovl=1, outsc=0, side1=2, side2K=5, side2Q=4, pk=1, sigK=14, sigQ=14, sig2=12, rate2=42)
for a in sys.argv[2:]:
    k, v = a.split("=")
    CFG[k] = int(v)

A_GRP = 0x250000
A_OFF = 0x10000
WS_KVP = 0x950000
WS_Z = 0x9D0000
WS_G = 0x9E0000
WS_CNT = 0x9F0000
WS_DBG = 0xA00000
WS_SIZE = 0x1000000
UNIT = 16384
MISC = 9 * UNIT

SRD_X, SRD_QKV, SRD_W1, SRD_WO, SRD_W2, SRD_WS, SRD_OUT, SRD_GATE = [("s[%d:%d]" % (b, b + 3)) for b in range(4, 36, 4)]
WSP = "s[24:25]"
sW, sRW, sCW, sRB, sCG, sP, sR2, sCT = ["s%d" % i for i in range(42, 50)]
sXs, sWs, sRot, sTa, sTb, sM0w, sBH, sBO = ["s%d" % i for i in range(50, 58)]
sCntSig, sCntKV, sCntGsig, sCntH, sCntG, sCntGq = ["s%d" % i for i in range(58, 64)]
STMP = 64
sPollH, sPoll, sTO, sTc = "s96", "s97", "s98", "s99"
sPollG = "s32"
sUA, sUB = "s3", "s2"

vL = "v1"
vXs = ["v%d" % i for i in range(2, 6)]
vW1 = ["v%d" % i for i in range(6, 10)]
vWp2 = ["v%d" % i for i in range(10, 14)]
vXr = [["v%d" % (14 + R * 4 + t) for t in range(4)] for R in range(2)]
vWr = "v22"
vP2r = ["v23", "v24", "v25", "v26"]
vW2s = ["v27", "v28"]
vW2r = ["v29", "v30", "v31"]
vSt = ["v32", "v33"]
vL16, vS4, vA, vGoff = "v34", "v35", "v36", "v37"
vGv = 38
FR = 40
ACC = 64
ACC2 = 128
BIAS = 176
TMP = 208
vStamp = "v255"
vMaskHi = "v254"


def vr(b, n=1):
    return "v%d" % b if n == 1 else "v[%d:%d]" % (b, b + n - 1)


def ar(b, n=1):
    return "a%d" % b if n == 1 else "a[%d:%d]" % (b, b + n - 1)


class Gen(Prog):
    def __init__(self, pfx):
        super().__init__()
        self.q = []
        self.ev = set()
        self.pre_done = False
        self.pfx = pfx
        self.side = []
        self.credit = 0.0
        self.vml = []
        self.psig = None
        self.nl = 0

    def __call__(self, text, tag=None):
        Prog.__call__(self, text, tag)
        if self.l[-1].kind == "vmem":
            self.vml.append(tag)
            if self.psig and len(self.vml) - 1 - self.lastidx(self.psig[0]) >= self.psig[2]:
                self.waitvm(self.psig[0])
        return self

    def lastidx(self, tag):
        return max(i for i, t in enumerate(self.vml) if t == tag)

    def waitvm(self, *tags):
        Prog.waitvm(self, *tags)
        if self.psig and max(self.lastidx(t) for t in tags) >= self.lastidx(self.psig[0]):
            fn = self.psig[1]
            self.psig = None
            fn()

    def signal_when(self, tag, fn, maxyounger):
        assert self.psig is None
        self.psig = (tag, fn, maxyounger)

    def lab(self, n):
        self.nl += 1
        return "L%s_%s%d" % (self.pfx, n, self.nl)

    def push(self, pre, dma, tag, event=None, hook=None):
        self.q.append((pre, dma, tag, event, hook))

    def fill(self, n=1):
        for _ in range(n):
            if not self.q:
                return
            pre, dma, tag, event, hook = self.q[0]
            if event is not None and event not in self.ev:
                return
            self.q.pop(0)
            if hook:
                hook()
            if not self.pre_done:
                for x in pre:
                    self(x)
            self(dma, tag)
            self.pre_done = False
            if self.q:
                for x in self.q[0][0]:
                    self(x)
                self.pre_done = True

    def flush_until(self, tag):
        while any(x[2] == tag for x in self.q):
            n = len(self.q)
            self.fill(1)
            if len(self.q) == n:
                raise ValueError("queue blocked on event %r while flushing to %r" % (self.q[0][3], tag))

    def need(self, *tags):
        for t in tags:
            self.flush_until(t)
        self.waitvm(*tags)

    def barrier(self, name):
        if self.side and isinstance(self.side[0], tuple) and self.side[0][0] == "@bar":
            self.waitlg(self.side[0][1])
            self.side.pop(0)
        self("s_barrier")
        self.ev.add(name)

    def emit_item(self, x):
        if isinstance(x, tuple):
            self(x[0], x[1])
            return 1
        if callable(x):
            x()
            return 3
        self(x)
        if x.startswith("v_mfma"):
            return 99
        return 2 if x.startswith(TRANS) else 1

    def gap(self, budget, rate=0.0):
        self.credit += rate
        while self.credit >= 1.0:
            n = len(self.q)
            self.fill(1)
            self.credit -= 1.0
            if len(self.q) == n:
                self.credit = 0.0
        while budget > 0 and self.side:
            x = self.side[0]
            if isinstance(x, tuple) and x[0] == "@bar":
                return
            if isinstance(x, tuple) and x[0] == "@skip":
                if x[1] <= 1:
                    self.side.pop(0)
                else:
                    self.side[0] = ("@skip", x[1] - 1)
                return
            self.side.pop(0)
            budget -= self.emit_item(x)

    def flush_side(self, every=12):
        n = 0
        while self.side:
            x = self.side[0]
            if isinstance(x, tuple) and x[0] == "@bar":
                self.barrier("X%d" % len(self.l))
                continue
            self.side.pop(0)
            if isinstance(x, tuple) and x[0] == "@skip":
                continue
            self.emit_item(x)
            n += 1
            if n % every == 0:
                self.fill(1)

    def sprinkle(self, lines, every):
        for i, x in enumerate(lines):
            if isinstance(x, tuple):
                self(x[0], x[1])
            elif callable(x):
                x()
            else:
                self(x)
            if (i + 1) % every == 0:
                self.fill(1)

    def stamp(self, i):
        if CFG["stamps"] == 1 or (CFG["stamps"] == 2 and i in (0, 2, 3, 15)):
            self("s_memrealtime s[100:101]")
            self("s_waitcnt lgkmcnt(0)")
            self("v_writelane_b32 %s, s100, %d" % (vStamp, i))
            self("s_memtime s[100:101]")
            self("s_waitcnt lgkmcnt(0)")
            self("v_writelane_b32 %s, s100, %d" % (vStamp, 32 + i))

    def fstamp(self, grp, i):
        if CFG.get("fine", 0) == grp:
            self("%s s[%d:%d]" % ("s_memtime" if grp == 1 else "s_memrealtime", STMP + 2 * i, STMP + 2 * i + 1))

    def poll_issue(self, reg, off):
        self("s_mov_b32 %s, 0" % reg)
        self("s_atomic_add %s, %s, %s glc" % (reg, WSP, off))

    def gate(self, reg, off, shift, target, pending=True):
        top, done = self.lab("g"), self.lab("gd")
        if pending:
            self("s_waitcnt lgkmcnt(0)")
        self("%s:" % top)
        self("s_bfe_u32 %s, %s, 0x%x" % (sXs, reg, (8 << 16) | shift))
        self("s_cmp_ge_u32 %s, %d" % (sXs, target))
        self("s_cbranch_scc1 %s" % done)
        self("s_cmp_eq_u32 %s, 0" % sTO, "cond")
        self("s_cbranch_scc1 %s" % done, "cond")
        self("s_sub_u32 %s, %s, 1" % (sTO, sTO), "cond")
        self("s_mov_b32 %s, 0" % reg, "cond")
        self("s_atomic_add %s, %s, %s glc" % (reg, WSP, off), "cond")
        self("s_waitcnt lgkmcnt(0)", "cond")
        self("s_branch %s" % top, "cond")
        self("%s:" % done)

    def init_issue(self):
        self("s_load_dword %s, s[40:41], 0x0" % sPoll)

    def init_gate(self):
        top, done = self.lab("i"), self.lab("id")
        self("s_waitcnt lgkmcnt(0)")
        self("%s:" % top)
        self("s_cmp_lg_u32 %s, 0" % sPoll)
        self("s_cbranch_scc1 %s" % done)
        self("s_cmp_eq_u32 %s, 0" % sTO, "cond")
        self("s_cbranch_scc1 %s" % done, "cond")
        self("s_sub_u32 %s, %s, 1" % (sTO, sTO), "cond")
        self("s_sleep 8", "cond")
        self("s_atomic_add %s, s[40:41], 0x0 glc" % sPoll, "cond")
        self("s_waitcnt lgkmcnt(0)", "cond")
        self("s_branch %s" % top, "cond")
        self("%s:" % done)

    def signal(self, off, val):
        self("s_atomic_add %s, %s, %s" % ("s0" if val == 1 else "s1", WSP, off))


def bias_lines(dst, sbase):
    out = []
    for hh in range(2):
        if hh == 0:
            out.append("s_mov_b32 exec_hi, 0")
        else:
            out.append("s_mov_b32 exec_hi, -1")
            out.append("s_mov_b32 exec_lo, 0")
        for m in range(4):
            for e in range(2):
                s = "s%d" % (sbase + 4 * m + 2 * hh + e)
                out.append("v_lshlrev_b32_e64 v%d, 16, %s" % (dst + 4 * m + 2 * e, s))
                out.append("v_and_b32 v%d, %s, %s" % (dst + 4 * m + 2 * e + 1, s, vMaskHi))
    out.append("s_mov_b64 exec, -1")
    return out


def prologue():
    P = Prog()
    P("s_cmp_ge_u32 s2, 256")
    P("s_cbranch_scc1 L_end")
    for srd, off in ((4, 0), (8, 8), (12, 32), (32, 64), (24, 88), (36, 40), (40, 80), (16, 16), (20, 48), (28, 72), (38, 56)):
        P("s_load_dwordx2 s[%d:%d], s[0:1], %d" % (srd, srd + 1, off))
    P("v_lshrrev_b32 v2, 6, v0")
    P("v_and_b32 %s, 63, v0" % vL)
    P("v_readfirstlane_b32 %s, v2" % sW)
    for srd, size in ((4, 2097152), (8, 1572864), (12, 1835008), (16, 524288), (20, 1835008), (24, WS_SIZE), (28, 2097152), (32, 1024)):
        P("s_mov_b32 s%d, 0x%x" % (srd + 2, size))
        P("s_mov_b32 s%d, 0x20000" % (srd + 3))
    P("s_and_b32 %s, s2, 7" % sTa)
    P("s_lshr_b32 %s, s2, 3" % sTb)
    P("s_and_b32 %s, %s, 1" % (sRB, sTa))
    P("s_lshl_b32 %s, %s, 3" % (sRB, sRB))
    P("s_and_b32 %s, %s, 7" % (sTc, sTb))
    P("s_add_u32 %s, %s, %s" % (sRB, sRB, sTc))
    P("s_lshr_b32 %s, %s, 1" % (sCG, sTa))
    P("s_lshl_b32 %s, %s, 2" % (sCG, sCG))
    P("s_lshr_b32 %s, %s, 3" % (sTc, sTb))
    P("s_add_u32 %s, %s, %s" % (sCG, sCG, sTc))
    P("s_lshr_b32 %s, %s, 1" % (sP, sCG))
    P("s_lshl_b32 %s, %s, 2" % (sR2, sTa))
    P("s_and_b32 %s, %s, 3" % (sTc, sTb))
    P("s_add_u32 %s, %s, %s" % (sR2, sR2, sTc))
    P("s_lshr_b32 %s, %s, 2" % (sCT, sTb))
    if CFG["rot"] == 0:
        P("s_mov_b32 %s, 0" % sRot)
    elif CFG["rot"] == 1:
        P("s_mov_b32 %s, %s" % (sRot, sTa))
    elif CFG["rot"] == 3:
        P("s_xor_b32 %s, %s, %s" % (sRot, sRB, sCG))
        P("s_and_b32 %s, %s, 1" % (sRot, sRot))
        P("s_lshl_b32 %s, %s, 2" % (sRot, sRot))
        P("s_add_u32 %s, %s, %s" % (sRot, sRot, sTa))
    elif CFG["rot"] == 4:
        P("s_add_u32 %s, %s, %s" % (sRot, sRB, sCG))
        P("s_lshl_b32 %s, %s, 1" % (sRot, sRot))
        P("s_bfe_u32 %s, %s, 0x10002" % (sTc, sCG))
        P("s_add_u32 %s, %s, %s" % (sRot, sRot, sTc))
    else:
        P("s_lshl_b32 %s, %s, 1" % (sRot, sCG))
        P("s_add_u32 %s, %s, %s" % (sRot, sRot, sRB))
        P("s_bfe_u32 %s, %s, 0x10002" % (sTc, sCG))
        P("s_add_u32 %s, %s, %s" % (sRot, sRot, sTc))
    P("s_lshr_b32 %s, %s, 1" % (sRW, sW))
    P("s_and_b32 %s, %s, 1" % (sCW, sW))
    P("s_lshl_b32 %s, %s, 12" % (sM0w, sW))
    P("s_mov_b32 %s, 0x8000" % sTO)
    P("v_lshlrev_b32 %s, 4, %s" % (vL16, vL))
    t0, t1, t2, t3 = "v240", "v241", "v242", "v243"
    P("v_lshrrev_b32 %s, 3, %s" % (t0, vL))
    P("v_lshrrev_b32 %s, 4, %s" % (t1, vL))
    P("v_and_b32 %s, 7, %s" % (t2, vL))
    P("v_xor_b32 %s, %s, %s" % (t2, t2, t1))
    P("v_lshlrev_b32 %s, 4, %s" % (t2, t2))
    P("s_lshl_b32 %s, %s, 15" % (sTc, sW))
    P("v_lshl_add_u32 %s, %s, 10, %s" % (t2, t0, t2))
    P("v_add_u32 %s, %s, %s" % (vXs[0], sTc, t2))
    P("v_xor_b32 %s, 64, %s" % (vXs[1], vXs[0]))
    P("v_add_u32 %s, 0x2000, %s" % (vXs[1], vXs[1]))
    P("v_add_u32 %s, 0x4000, %s" % (vXs[2], vXs[0]))
    P("v_add_u32 %s, 0x4000, %s" % (vXs[3], vXs[1]))
    P("s_bitcmp1_b32 %s, 0" % sCG)
    P("s_cbranch_scc1 L_Q")
    return P


def chunk_pre(c, pitch, with_x):
    pre = ["s_add_u32 %s, %s, %d" % (sTa, sRot, c), "s_and_b32 %s, %s, 7" % (sTa, sTa)]
    if with_x:
        pre += ["s_lshl_b32 %s, %s, 10" % (sXs, sRB), "s_add_u32 %s, %s, %s" % (sXs, sXs, sTa), "s_lshl_b32 %s, %s, 7" % (sXs, sXs)]
    pre += ["s_mul_i32 %s, %s, %d" % (sWs, sTa, 64 * pitch)]
    return pre


def build(isQ):
    G = Gen("Q" if isQ else "K")
    t0, t1, t2, t3, t4 = "v240", "v241", "v242", "v243", "v244"
    srdA, pitchA = (SRD_W1, 3584) if isQ else (SRD_QKV, 3072)
    srdB, pitchB = (SRD_QKV, 3072) if isQ else (SRD_W1, 3584)
    if isQ:
        G("L_Q:")
    if CFG["stamps"]:
        G("v_mov_b32 %s, 0" % vStamp)
    G("v_bfe_u32 %s, %s, 2, 2" % (t2, vL))
    G("s_lshl_b32 %s, %s, 4" % (sTc, sW))
    G("v_add_u32 %s, %s, %s" % (t2, sTc, t2))
    G("v_and_b32 %s, 3, %s" % (t3, vL))
    G("v_lshlrev_b32 %s, 4, %s" % (t3, t3))
    G("s_and_b32 %s, %s, 1" % (sTb, sP))
    if isQ:
        G("s_mul_i32 %s, %s, 448" % (sTa, sP))
        G("s_mul_i32 %s, %s, 192" % (sTc, sTb))
        G("s_add_u32 %s, %s, %s" % (sTa, sTa, sTc))
        G("v_lshl_add_u32 %s, %s, 6, %s" % (t4, t1, t3))
    else:
        G("s_lshl_b32 %s, %s, 7" % (sTa, sP))
        G("s_add_u32 %s, %s, 1024" % (sTa, sTa))
        G("v_and_b32 %s, 1, %s" % (t4, t1))
        G("v_lshl_add_u32 %s, %s, 6, %s" % (t4, t4, t3))
        G("v_lshrrev_b32 %s, 5, %s" % (t0, vL))
        G("v_lshl_add_u32 %s, %s, 10, %s" % (t4, t0, t4))
    G("v_mul_u32_u24 %s, %d, %s" % (vW1[0], pitchA, t2))
    G("v_add3_u32 %s, %s, %s, %s" % (vW1[0], vW1[0], t4, sTa))
    for i in range(1, 4):
        G("v_add_u32 %s, %d, %s" % (vW1[i], 4 * i * pitchA, vW1[0]))
    if isQ:
        G("s_lshl_b32 %s, %s, 6" % (sTc, sCW))
        G("s_add_u32 %s, %s, %s" % (sUA, sTa, sTc))
        G("s_add_u32 %s, %s, 128" % (sBH, sUA))
    else:
        G("s_mul_i32 %s, %s, 448" % (sTa, sP))
        G("s_xor_b32 %s, %s, 1" % (sTc, sTb))
        G("s_lshl_b32 %s, %s, 8" % (sTc, sTc))
        G("s_add_u32 %s, %s, %s" % (sTa, sTa, sTc))
        G("s_lshl_b32 %s, %s, 7" % (sTc, sCW))
        G("s_add_u32 %s, %s, %s" % (sUA, sTa, sTc))
        G("s_add_u32 %s, %s, 64" % (sBH, sTa))
        G("s_and_b32 %s, %s, 0xffffff80" % (sBO, sTa))
    G("s_lshl_b32 %s, %s, 4" % (sTc, sRB))
    G("s_add_u32 %s, %s, %s" % (sTc, sTc, sCG))
    G("s_lshl_b32 %s, %s, 2" % (sTc, sTc))
    G("s_add_u32 %s, %s, %s" % (sTc, sTc, sW))
    G("s_lshl_b32 %s, %s, 11" % (sPoll, sTc))
    G("s_lshl_b32 %s, %s, 3" % (sPollH, sTc))
    G("s_waitcnt lgkmcnt(0)")
    G("s_mov_b32 s0, 1")
    G("s_mov_b32 s1, 0x%x" % (0x10000 if isQ else 0x100))
    if not isQ:
        G("s_or_b32 %s, s2, %s" % (sTc, sW))
        G("s_cmp_lg_u32 %s, 0" % sTc)
        G("s_cbranch_scc1 LK_noinit")
        G("v_lshlrev_b32 v245, 8, %s" % vL, "cond")
        G("v_mov_b32 v246, 0", "cond")
        G("s_mov_b32 %s, 0x%x" % (sTc, WS_CNT), "cond")
        G.l.append(Ins("buffer_store_dword v246, v245, %s, %s offen sc1" % (SRD_WS, sTc), "cond"))
        G("s_add_u32 %s, %s, 0x4000" % (sTc, sTc), "cond")
        G.l.append(Ins("buffer_store_dword v246, v245, %s, %s offen sc1" % (SRD_WS, sTc), "cond"))
        G("s_add_u32 %s, %s, 0x4000" % (sTc, sTc), "cond")
        G.l.append(Ins("buffer_store_dword v246, v245, %s, %s offen sc1" % (SRD_WS, sTc), "cond"))
        G("LK_noinit:")
    GX0, GX1, GW = TMP, TMP + 4, TMP + 8
    G("buffer_load_dwordx4 %s, %s, %s, 0 offen" % (vr(GW, 4), vL16, SRD_GATE), "g")
    G("s_load_dwordx16 s[%d:%d], s[36:37], %s" % (STMP, STMP + 15, sUA))
    G("s_load_dwordx16 s[%d:%d], s[36:37], %s" % (STMP + 16, STMP + 31, sBH))

    def prefetch():
        pf = CFG["pf"]
        if not pf:
            return 0
        pv, pd = "v247", "v253"
        lw = [G.lab("pw") for _ in range(4)]
        le = G.lab("pe")

        def setsrd(b):
            G("s_mov_b32 s32, s%d" % b, "cond")
            G("s_mov_b32 s33, s%d" % (b + 1), "cond")
            G("s_mov_b32 s34, s%d" % (b + 2), "cond")
        G("s_lshl_b32 %s, s2, 6" % sTc)
        G("v_add_u32 %s, %s, %s" % (pv, sTc, vL))
        G("s_cmp_eq_u32 %s, 1" % sW)
        G("s_cbranch_scc1 %s" % lw[1])
        G("s_cmp_eq_u32 %s, 2" % sW, "cond")
        G("s_cbranch_scc1 %s" % lw[2], "cond")
        G("s_cmp_eq_u32 %s, 3" % sW, "cond")
        G("s_cbranch_scc1 %s" % lw[3], "cond")
        if pf == 1:
            setsrd(4)
        else:
            G("s_lshr_b32 %s, s2, 3" % sTc, "cond")
            G("s_mul_i32 %s, %s, 56" % (sTc, sTc), "cond")
            G("v_min_u32 %s, 55, %s" % (pv, vL), "cond")
            G("v_add_u32 %s, %s, %s" % (pv, sTc, pv), "cond")
            G("v_lshl_add_u32 %s, %s, 3, 3" % (pv, pv), "cond")
            setsrd(20)
        G("s_branch %s" % le, "cond")
        G("%s:" % lw[1])
        lo = G.lab("po")
        G("s_cmp_ge_u32 s2, 192", "cond")
        G("s_cbranch_scc1 %s" % lo, "cond")
        if pf == 2:
            G("v_lshrrev_b32 %s, 3, %s" % (pd, pv), "cond")
            G("v_lshl_add_u32 %s, %s, 4, %s" % (pv, pd, pv), "cond")
        setsrd(8)
        G("s_branch %s" % le, "cond")
        G("%s:" % lo)
        G("v_subrev_u32 %s, %d, %s" % (pv, 192 * 64, pv), "cond")
        setsrd(16)
        G("s_branch %s" % le, "cond")
        G("%s:" % lw[2])
        setsrd(12)
        G("s_branch %s" % le, "cond")
        G("%s:" % lw[3])
        setsrd(20)
        G("%s:" % le)
        G("v_lshlrev_b32 %s, 7, %s" % (pv, pv))
        G("buffer_load_dword %s, %s, %s, 0 offen" % (pd, pv, SRD_GATE), "pf")
        lw = [G.lab("pw") for _ in range(4)]
        le = G.lab("pe")
        G("s_cmp_eq_u32 %s, 1" % sW)
        G("s_cbranch_scc1 %s" % lw[1])
        G("s_cmp_eq_u32 %s, 2" % sW, "cond")
        G("s_cbranch_scc1 %s" % lw[2], "cond")
        G("s_cmp_eq_u32 %s, 3" % sW, "cond")
        G("s_cbranch_scc1 %s" % lw[3], "cond")
        G("v_mul_u32_u24 %s, 0x%x, %s" % (pv, A_GRP, vL), "cond")
        setsrd(24)
        G("s_branch %s" % le, "cond")
        G("%s:" % lw[1])
        G("s_lshl_b32 %s, %s, 16" % (sTc, sR2), "cond")
        G("v_lshl_add_u32 %s, %s, 26, %s" % (pv, vL, sTc), "cond")
        setsrd(28)
        G("s_branch %s" % le, "cond")
        G("%s:" % lw[2])
        G("s_lshr_b32 %s, s2, 3" % sTc, "cond")
        G("s_lshl_b32 %s, %s, 4" % (sTc, sTc), "cond")
        G("v_min_u32 %s, 15, %s" % (pv, vL), "cond")
        G("v_add_u32 %s, %s, %s" % (pv, sTc, pv), "cond")
        G("v_lshl_add_u32 %s, %s, 3, 3" % (pv, pv), "cond")
        G("v_lshlrev_b32 %s, 7, %s" % (pv, pv), "cond")
        setsrd(16)
        G("s_branch %s" % le, "cond")
        G("%s:" % lw[3])
        if pf == 1:
            G("s_lshr_b32 %s, s2, 3" % sTc, "cond")
            G("s_mul_i32 %s, %s, 56" % (sTc, sTc), "cond")
            G("v_min_u32 %s, 55, %s" % (pv, vL), "cond")
            G("v_add_u32 %s, %s, %s" % (pv, sTc, pv), "cond")
            G("v_lshl_add_u32 %s, %s, 3, 3" % (pv, pv), "cond")
            G("v_lshlrev_b32 %s, 7, %s" % (pv, pv), "cond")
            setsrd(20)
        else:
            G("v_lshlrev_b32 %s, 26, %s" % (pv, vL), "cond")
            setsrd(8 if isQ else 12)
        G("%s:" % le)
        G("buffer_load_dword %s, %s, %s, 0 offen" % (pd, pv, SRD_GATE), "pf")
        return 2

    for c in range(8):
        ev = None if c <= CFG["dist"] else "B%d" % (c - CFG["dist"])
        for i in range(4):
            pre = chunk_pre(c, pitchA, True) if i == 0 else []
            G.push(pre + ["s_add_u32 m0, %s, %d" % (sM0w, (c % 4) * UNIT + i * 1024)],
                   "buffer_load_dwordx4 %s, %s, %s offen lds" % (vXs[i], SRD_X, sXs), ("c1", c), ev)
            G.push(["s_add_u32 m0, %s, %d" % (sM0w, (4 + c % 4) * UNIT + i * 1024)],
                   "buffer_load_dwordx4 %s, %s, %s offen lds" % (vW1[i], srdA, sWs), ("c1", c), ev)
    npf = 0
    if CFG["pf"] == 1:
        npf = prefetch()
    G.fill(8)
    if CFG["pf"] == 2:
        npf = prefetch()
    G("buffer_load_dwordx4 %s, %s, %s, %s offen" % (vr(GX0, 4), vL16, SRD_X, sPoll), "g")
    G("buffer_load_dwordx4 %s, %s, %s, %s offen offset:1024" % (vr(GX1, 4), vL16, SRD_X, sPoll), "g")
    if not isQ:
        G("s_or_b32 %s, s2, %s" % (sTc, sW))
        G("s_cmp_lg_u32 %s, 0" % sTc)
        G("s_cbranch_scc1 LK_noinit2")
        G("s_waitcnt vmcnt(%d)" % (11 + npf), "cond")
        G("s_atomic_add s0, s[40:41], 0x0", "cond")
        G("LK_noinit2:")
    G.stamp(0)
    G("s_lshl_b32 %s, %s, 9" % (sUB, sBH))
    G("s_lshl_b32 %s, %s, 9" % (sUA, sUA))
    h, s32 = "v245", "v246"
    G("v_lshrrev_b32 %s, 5, %s" % (h, vL))
    G("v_and_b32 %s, 31, %s" % (s32, vL))
    G("v_lshlrev_b32 %s, 2, %s" % (vS4, s32))
    G("v_mov_b32 %s, 0xffff0000" % vMaskHi)
    G("v_bfe_u32 %s, %s, 1, 3" % (t0, s32))
    G("v_xor_b32 %s, %s, %s" % (t0, t0, h))
    G("v_lshlrev_b32 %s, 4, %s" % (t0, t0))
    G("v_lshl_add_u32 %s, %s, 7, %s" % (t0, s32, t0))
    G("v_add_u32 %s, %s, %s" % (vXr[0][0], sM0w, t0))
    G("v_xor_b32 %s, 0x1000, %s" % (vXr[1][0], vXr[0][0]))
    for R in range(2):
        for t in range(1, 4):
            G("v_xor_b32 %s, %d, %s" % (vXr[R][t], t << 5, vXr[R][0]))
    G("v_bfe_u32 %s, %s, 2, 2" % (t0, vL))
    G("v_lshlrev_b32 %s, 6, %s" % (t4, t0))
    G("v_and_b32 %s, 1, %s" % (t0, t1))
    G("v_lshl_add_u32 %s, %s, 5, %s" % (t4, t0, t4))
    G("v_lshrrev_b32 %s, 1, %s" % (t0, t3))
    G("v_add_u32 %s, %s, %s" % (t4, t4, t0))
    G("v_lshl_add_u32 %s, %s, 11, %s" % (t0, h, t4))
    G("s_lshl_b32 %s, %s, 8" % (sTc, sCW))
    G("s_add_u32 %s, %s, 0x10000" % (sTc, sTc))
    G("v_add_u32 %s, %s, %s" % (vWr, sTc, t0))
    G.fill(2)
    G("s_waitcnt lgkmcnt(0)")
    for x in bias_lines(BIAS, STMP) + bias_lines(BIAS + 16, STMP + 16):
        G(x)
    G.fill(2)

    S = G.side.append
    if isQ:
        S("v_lshl_add_u32 %s, %s, 10, %s" % (vP2r[0], h, t4))
        S("s_lshl_b32 %s, %s, 9" % (sTc, sCW))
        S("v_add_u32 %s, %s, %s" % (vP2r[0], sTc, vP2r[0]))
        S("v_add_u32 %s, 0x10000, %s" % (vP2r[1], vP2r[0]))
    else:
        S("s_lshl_b32 %s, %s, 1" % (sTc, sCW))
        S("s_add_u32 %s, %s, %s" % (sTc, sTc, sTb))
        S("s_lshl_b32 %s, %s, 8" % (sTc, sTc))
        S("v_add_u32 %s, %s, %s" % (vP2r[0], sTc, t0))
        S("v_add_u32 %s, 0x10000, %s" % (vP2r[1], vP2r[0]))
        S("s_add_u32 %s, %s, 1" % (sTc, sTb))
        S("s_lshl_b32 %s, %s, 8" % (sTc, sTc))
        S("v_add_u32 %s, %s, %s" % (vP2r[2], sTc, t0))
        S("v_add_u32 %s, 0x10000, %s" % (vP2r[3], vP2r[2]))
    S("v_lshl_add_u32 %s, %s, 8, %s" % (t0, h, t4))
    S("v_add_u32 %s, %s, %s" % (vW2r[0], sM0w, t0))
    S("v_add_u32 %s, 0x10000, %s" % (vW2r[1], vW2r[0]))
    S("v_add_u32 %s, 0x20000, %s" % (vW2r[2], vW2r[0]))
    if isQ:
        S("v_bfe_u32 %s, %s, 2, 3" % (t0, vL))
        S("s_lshl_b32 %s, %s, 4" % (sTc, sW))
        S("v_add_u32 %s, %s, %s" % (t0, sTc, t0))
        S("v_mul_u32_u24 %s, %d, %s" % (vWp2[0], pitchB, t0))
        S("v_lshl_add_u32 %s, %s, 6, %s" % (t4, h, t3))
        S("s_lshl_b32 %s, %s, 7" % (sTc, sP))
        S("v_add3_u32 %s, %s, %s, %s" % (vWp2[0], vWp2[0], t4, sTc))
        S("v_add_u32 %s, %d, %s" % (vWp2[1], 8 * pitchB, vWp2[0]))
    else:
        S("v_mul_u32_u24 %s, %d, %s" % (vWp2[0], pitchB, t2))
        S("v_lshl_add_u32 %s, %s, 6, %s" % (t4, t1, t3))
        S("v_add3_u32 %s, %s, %s, %s" % (vWp2[0], vWp2[0], t4, sBO))
        for i in range(1, 4):
            S("v_add_u32 %s, %d, %s" % (vWp2[i], 4 * i * pitchB, vWp2[0]))
    S("v_bfe_u32 %s, %s, 2, 3" % (t0, vL))
    S("v_lshl_add_u32 %s, %s, 6, %s" % (t4, h, t3))
    S("v_lshl_add_u32 %s, %s, 10, %s" % (t0, t0, t4))
    S("s_lshl_b32 %s, %s, 7" % (sTc, sCT))
    S("v_add_u32 %s, %s, %s" % (vW2s[0], sTc, t0))
    S("v_add_u32 %s, 0x2000, %s" % (vW2s[1], vW2s[0]))
    S("s_lshr_b32 %s, %s, 2" % (sTc, sRB))
    S("s_mul_i32 %s, %s, %d" % (sTc, sTc, A_GRP))
    S("s_and_b32 %s, %s, 3" % (sBH, sRB))
    S("s_lshl_b32 %s, %s, 2" % (sBH, sBH))
    S("s_add_u32 %s, %s, %s" % (sBH, sBH, sW))
    S("s_lshl_b32 %s, %s, 10" % (sBH, sBH))
    S("s_add_u32 %s, %s, %s" % (sTc, sTc, sBH))
    S("s_add_u32 %s, %s, 0x%x" % (sTc, sTc, A_OFF))
    S("v_add_u32 %s, %s, %s" % (vSt[0], sTc, vL16))
    S("v_xor_b32 %s, 0x400, %s" % (vSt[1], vSt[0]))
    S("s_lshr_b32 %s, %s, 3" % (sTc, sR2))
    S("s_mul_i32 %s, %s, %d" % (sTc, sTc, A_GRP))
    S("s_and_b32 %s, %s, 7" % (sBH, sR2))
    S("s_lshl_b32 %s, %s, 11" % (sBH, sBH))
    S("s_add_u32 %s, %s, %s" % (sTc, sTc, sBH))
    S("s_add_u32 %s, %s, 0x%x" % (sTc, sTc, A_OFF))
    S("v_add_u32 %s, %s, %s" % (vA, sTc, vL16))
    S("s_mul_i32 %s, %s, %d" % (sBH, sW, 28 * UNIT))
    S("s_lshl_b32 %s, %s, 17" % (sBO, sW))
    S(lambda: G.ev.add("setup"))
    S("s_add_u32 %s, %s, 0x%x" % (sPollH, sPollH, WS_G))
    S("v_cmp_eq_u32 vcc, 63, %s" % vL)
    S("v_mov_b32 %s, %s" % (t0, sPollH))
    S("v_mov_b32 %s, 0x7fffff00" % t4)
    S("v_cndmask_b32 %s, %s, %s, vcc" % (vGoff, t4, t0))
    S("s_lshl_b32 %s, %s, 1" % (sTc, sRB))
    S("s_add_u32 %s, %s, %s" % (sCntGq, sTc, sRW))
    S("s_lshl_b32 %s, %s, 2" % (sCntSig, sCntGq))
    S("s_lshr_b32 %s, %s, 2" % (sPoll, sCG))
    S("s_add_u32 %s, %s, %s" % (sCntSig, sCntSig, sPoll))
    S("s_lshr_b32 %s, %s, 3" % (sPoll, sCG))
    S("s_add_u32 %s, %s, %s" % (sCntGsig, sTc, sPoll))
    S("s_lshl_b32 %s, %s, 1" % (sCntKV, sP))
    S("s_add_u32 %s, %s, %s" % (sCntKV, sCntKV, sCW))
    S("s_lshl_b32 %s, %s, 2" % (sCntH, sR2))
    S("s_add_u32 %s, %s, %s" % (sCntH, sCntH, sW))
    S("s_mov_b32 %s, %s" % (sCntG, sR2))
    for s, b in ((sCntSig, 0), (sCntKV, 128), (sCntGsig, 144), (sCntH, 0), (sCntG, 144), (sCntGq, 144)):
        S("s_lshl_b32 %s, %s, 8" % (s, s))
        S("s_add_u32 %s, %s, 0x%x" % (s, s, WS_CNT + b * 256))
    S(lambda: G.waitvm("g"))
    GU = TMP + 12
    XU = TMP + 20
    for i in range(4):
        S("v_lshlrev_b32 v%d, 16, v%d" % (GU + 2 * i, GW + i))
        S("v_and_b32 v%d, %s, v%d" % (GU + 2 * i + 1, vMaskHi, GW + i))
    for r, GX in enumerate((GX0, GX1)):
        for i in range(4):
            S("v_lshlrev_b32 v%d, 16, v%d" % (XU + 2 * i, GX + i))
            S("v_and_b32 v%d, %s, v%d" % (XU + 2 * i + 1, vMaskHi, GX + i))
        for i in range(8):
            S("v_mul_f32 v%d, v%d, v%d" % (XU + i, XU + i, GU + i))
        for i in range(4):
            S("v_cvt_pk_bf16_f32 v%d, v%d, v%d" % (GX + i, XU + 2 * i, XU + 2 * i + 1))
        for i in range(4):
            S("v_lshlrev_b32 v%d, 16, v%d" % (XU + 2 * i, GX + i))
            S("v_and_b32 v%d, %s, v%d" % (XU + 2 * i + 1, vMaskHi, GX + i))
        for i in range(4):
            S("v_add_f32 v%d, v%d, v%d" % (XU + i, XU + i, XU + 4 + i))
        S("v_add_f32 v%d, v%d, v%d" % (XU, XU, XU + 2))
        S("v_add_f32 v%d, v%d, v%d" % (XU + 1, XU + 1, XU + 3))
        S("v_add_f32 v%d, v%d, v%d" % (vGv + r, XU, XU + 1))
    for mod in ("row_shr:1 row_mask:0xf", "row_shr:2 row_mask:0xf", "row_shr:4 row_mask:0xf", "row_shr:8 row_mask:0xf",
                "row_bcast:15 row_mask:0xa", "row_bcast:31 row_mask:0xc"):
        S(("@skip", 1))
        for r in range(2):
            S("v_add_f32_dpp v%d, v%d, v%d %s bank_mask:0xf" % (vGv + r, vGv + r, vGv + r, mod))
    S("v_cvt_pk_bf16_f32 v%d, v%d, v%d" % (XU, vGv, vGv + 1))
    S("v_lshlrev_b32 v%d, 16, v%d" % (vGv, XU))
    S("v_and_b32 v%d, %s, v%d" % (vGv + 1, vMaskHi, XU))
    for r in range(2):
        S("v_mul_f32 v%d, 0xbfb8aa3b, v%d" % (vGv + r, vGv + r))
    for r in range(2):
        S("v_exp_f32 v%d, v%d" % (vGv + r, vGv + r))
    for r in range(2):
        S("v_add_f32 v%d, 1.0, v%d" % (vGv + r, vGv + r))
    for r in range(2):
        S("v_rcp_f32 v%d, v%d" % (vGv + r, vGv + r))
    S(("@skip", 1))
    S("v_cvt_pk_bf16_f32 v%d, v%d, v%d" % (XU, vGv, vGv + 1))
    S("v_lshlrev_b32 v%d, 16, v%d" % (vGv, XU))
    S("v_and_b32 v%d, %s, v%d" % (vGv + 1, vMaskHi, XU))

    if isQ:
        p2unit = [0, 0, 4, 4, 1, 1, 5, 5]
        for c in range(8):
            ev = "B%d" % (8 - CFG["dist"] + c // 4)
            for i in range(2):
                pre = chunk_pre(c, pitchB, False) if i == 0 else []
                G.push(pre + ["s_lshr_b32 m0, %s, 1" % sM0w, "s_add_u32 m0, m0, %d" % (p2unit[c] * UNIT + (c & 1) * 8192 + i * 1024)],
                       "buffer_load_dwordx4 %s, %s, %s offen lds" % (vWp2[i], srdB, sWs), ("c2", c), ev)
        ulist = [(8, None), (2, "B7"), (6, "B7"), (3, "B8"), (7, "B8"), (0, "C2"), (4, "C3"), (1, "C4"), (5, "C5")]
    else:
        p2unit = [0, 4, 1, 5, 2, 6, 3, 7]
        for c in range(8):
            ev = "B%d" % min(8, 8 - CFG["dist"] + c // 2)
            for i in range(4):
                pre = chunk_pre(c, pitchB, False) if i == 0 else []
                G.push(pre + ["s_add_u32 m0, %s, %d" % (sM0w, p2unit[c] * UNIT + i * 1024)],
                       "buffer_load_dwordx4 %s, %s, %s offen lds" % (vWp2[i], srdB, sWs), ("c2", c), ev)
        ulist = [(8, None)] + [(p2unit[c], "C%d" % (c + 2)) for c in range(8)]

    steps = [("h", u) for u in list(range(8)) + list(range(20, 28)) + list(range(8, 20))] + [("o", i) for i in range(8)]

    def push_w2(s, ev):
        k = (s % 18) // 2
        kind, u = steps[s]
        for j4 in range(2):
            pre = ["s_add_u32 %s, %s, %d" % (sWs, sBH if kind == "h" else sBO, u * UNIT)] if j4 == 0 else []
            G.push(pre + ["s_add_u32 m0, %s, %d" % (sM0w, ulist[k][0] * UNIT + (s & 1) * 2048 + j4 * 1024)],
                   "buffer_load_dwordx4 %s, %s, %s offen lds" % (vW2s[j4], SRD_W2 if kind == "h" else SRD_WO, sWs), ("w2", s), ev)
    for s in range(18):
        push_w2(s, ulist[s // 2][1])

    def reads1(g):
        c, t = g >> 2, g & 3
        fb = FR + (g % 3) * 8
        out = []
        for R in range(2):
            out.append(("ds_read_b128 %s, %s offset:%d" % (ar((g * 2 + R) * 4, 4), vXr[R][t], (c % 4) * UNIT), ("r1", g)))
        for tl in range(2):
            for j4 in range(2):
                out.append(("ds_read_b64_tr_b16 %s, %s offset:%d" % (vr(fb + tl * 4 + j4 * 2, 2), vWr, (c % 4) * UNIT + t * 4096 + j4 * 1024 + tl * 512), ("r1", g)))
        return out

    LAG2 = 4 if isQ else 2
    NB2 = 6 if isQ else 3
    FS2 = 4 if isQ else 8

    def reads2(g):
        c, t = g >> 2, g & 3
        fb = FR2 + ((g + LAG2) % NB2) * FS2
        u = p2unit[c]
        hi = 1 if u >= 4 else 0
        out = []
        if isQ:
            for j4 in range(2):
                out.append(("ds_read_b64_tr_b16 %s, %s offset:%d" % (vr(fb + j4 * 2, 2), vP2r[hi], (u % 4) * UNIT + (c & 1) * 8192 + t * 2048 + j4 * 256), ("r2", g)))
        else:
            for tl in range(2):
                for j4 in range(2):
                    out.append(("ds_read_b64_tr_b16 %s, %s offset:%d" % (vr(fb + tl * 4 + j4 * 2, 2), vP2r[tl * 2 + hi], (u % 4) * UNIT + t * 4096 + j4 * 1024), ("r2", g)))
        return out

    per = 8 if isQ else 4
    FR2 = FR
    G.fill(CFG.get("burst", 4))
    G.stamp(1)
    G.need(("c1", 0))
    G.barrier("B0")
    G.stamp(2)
    for g in range(2):
        for x in reads1(g):
            G(*x)
    for g in range(32):
        if (g + 2) % 4 == 0:
            c = (g + 2) // 4
            G.fstamp(1, 2 * c - 2)
            if c < 8:
                G.need(("c1", c))
            else:
                G.need(*[("c2", cc) for cc in range(per // 4)])
            G.waitlg(("r1", g + 1))
            G.barrier("B%d" % c)
            if c == 5:
                assert "setup" in G.ev
            G.fstamp(1, 2 * c - 1)
        if g + 2 < 32:
            rd = reads1(g + 2)
        else:
            rd = []
            for gg in range((g - 30) * LAG2 // 2, (g - 29) * LAG2 // 2):
                rd += reads2(gg)
        G.waitlg(("r1", g))
        fb = FR + (g % 3) * 8
        n = 0
        for tl in range(2):
            for R in range(2):
                d = vr(ACC + (tl * 2 + R) * 16, 16)
                x = ar((g * 2 + R) * 4, 4)
                wv = vr(fb + tl * 4, 4)
                cin = d if g > 0 else (vr(BIAS + tl * 16, 16) if isQ else "0")
                if isQ:
                    G("v_mfma_f32_32x32x16_bf16 %s, %s, %s, %s" % (d, wv, x, cin))
                else:
                    G("v_mfma_f32_32x32x16_bf16 %s, %s, %s, %s" % (d, x, wv, cin))
                for y in rd[2 * n:2 * n + 2]:
                    G(*y)
                G.gap(CFG["side1"], CFG["rate1"] / 100.0)
                n += 1
    G.flush_side()
    G.ev.add("C0")
    G.stamp(3)
    G.init_issue()

    def relu2_store(base, voff, soff, tag):
        out = []
        for i in range(16):
            out.append("v_max_f32 v%d, 0, v%d" % (base + i, base + i))
        for i in range(8):
            out.append("v_pk_mul_f32 %s, %s, %s" % (vr(base + 2 * i, 2), vr(base + 2 * i, 2), vr(base + 2 * i, 2)))
        for i in range(8):
            out.append("v_cvt_pk_bf16_f32 v%d, v%d, v%d" % (base + i, base + 2 * i, base + 2 * i + 1))
        st = [("buffer_store_dwordx4 %s, %s, %s, %s offen sc1" % (vr(base, 4), voff, SRD_WS, soff), tag),
              "s_add_u32 %s, %s, %d" % (sTb, soff, UNIT),
              ("buffer_store_dwordx4 %s, %s, %s, %s offen sc1" % (vr(base + 4, 4), voff, SRD_WS, sTb), tag)]
        return out, st

    cL2E, cEPS = "v252", "v251"

    def phi_pack(base, tmp):
        out = []
        if CFG["pk"]:
            for i in range(8):
                out.append("v_pk_mul_f32 %s, %s, v[252:253] op_sel_hi:[1,0]" % (vr(tmp + 2 * i, 2), vr(base + 2 * i, 2)))
        else:
            for i in range(16):
                out.append("v_mul_f32 v%d, %s, v%d" % (tmp + i, cL2E, base + i))
        for i in range(16):
            out.append("v_exp_f32_e64 v%d, v%d clamp" % (tmp + i, tmp + i))
            out.append("v_max_f32 v%d, %s, v%d" % (base + i, cEPS, base + i))
        if CFG["pk"]:
            for i in range(8):
                out.append("v_pk_add_f32 %s, %s, %s" % (vr(base + 2 * i, 2), vr(base + 2 * i, 2), vr(tmp + 2 * i, 2)))
        else:
            for i in range(16):
                out.append("v_add_f32 v%d, v%d, v%d" % (base + i, base + i, tmp + i))
        for i in range(8):
            out.append("v_cvt_pk_bf16_f32 v%d, v%d, v%d" % (base + i, base + 2 * i, base + 2 * i + 1))
        return out

    gstore = ("buffer_store_dwordx2 %s, %s, %s, 0 offen sc1" % (vr(vGv, 2), vGoff, SRD_WS), "pub1")

    def pub1_signal():
        G.signal(sCntSig if isQ else sCntKV, 1)
        G.signal(sCntGsig, 1)
        G.fstamp(2, 1)

    S("v_mov_b32 %s, 0x3fb8aa3b" % cL2E)
    S("v_mov_b32 %s, 0x358637bd" % cEPS)
    if isQ:
        sts = [gstore]
        for tl in range(2):
            for R in range(2):
                o, st = relu2_store(ACC + (tl * 2 + R) * 16, vSt[R], sUA if tl == 0 else sUB, "pub1")
                G.side += o
                sts += st
        G.side += sts
        S(lambda: G.fstamp(2, 0))
        S(lambda: G.signal_when("pub1", pub1_signal, CFG["sigQ"]))
    else:
        ONES = TMP + 32
        KD, ZD = TMP, TMP + 16
        for R in range(2):
            G.side += phi_pack(ACC + R * 16, TMP)
        for R in range(2):
            b = ACC + 32 + R * 16
            for i in range(8):
                S("v_cvt_pk_bf16_f32 v%d, v%d, v%d" % (b + i, b + 2 * i, b + 2 * i + 1))
        for i in range(4):
            S("v_mov_b32 v%d, 0x3f803f80" % (ONES + i))
        a0, a1, a2, a3 = "v244", "v245", "v246", "v247"
        S("v_and_b32 %s, 16, %s" % (a0, vL))
        S("v_cmp_eq_u32 vcc, 0, %s" % a0)
        n = 0
        for R in range(2):
            for kk in range(2):
                pk = vr(ACC + R * 16 + kk * 4, 4)
                vv = vr(ACC + 32 + R * 16 + kk * 4, 4)
                S("v_mfma_f32_32x32x16_bf16 %s, %s, %s, %s" % (vr(KD, 16), pk, vv, vr(KD, 16) if n else "0"))
                n += 1
        n = 0
        for R in range(2):
            for kk in range(2):
                pk = vr(ACC + R * 16 + kk * 4, 4)
                S("v_mfma_f32_32x32x16_bf16 %s, %s, %s, %s" % (vr(ZD, 16), vr(ONES, 4), pk, vr(ZD, 16) if n else "0"))
                n += 1
        S("s_lshl_b32 %s, %s, 10" % (sTc, sW))
        S("s_add_u32 %s, %s, %d" % (sTc, sTc, MISC))
        S("v_add_u32 %s, %s, %s" % (a0, sTc, vL16))
        S("v_xor_b32 %s, 0x800, %s" % (a1, a0))
        S("s_lshl_b32 %s, %s, 8" % (sTc, sW))
        S("s_add_u32 %s, %s, %d" % (sTc, sTc, MISC + 4096))
        S("v_lshl_add_u32 %s, %s, 2, %s" % (a2, vL, sTc))
        S("v_xor_b32 %s, 0x200, %s" % (a3, a2))
        for i in range(8):
            S("v_cndmask_b32 v%d, v%d, v%d, vcc" % (KD + i, KD + 8 + i, KD + i))

        def swp():
            G("s_cmp_eq_u32 %s, 0" % sRW)
            G("s_cbranch_scc1 LK_noswap")
            for i in range(4):
                G("v_swap_b32 v%d, v%d" % (KD + i, KD + 4 + i), "cond")
            G("LK_noswap:")
        S(swp)
        S(("ds_write_b128 %s, %s" % (a0, vr(KD + 4, 4)), "kx"))
        S(("ds_write_b32 %s, v%d" % (a2, ZD), "kx"))
        S("s_lshl_b32 %s, %s, 1" % (sTc, sP))
        S("s_add_u32 %s, %s, %s" % (sTc, sTc, sCW))
        S("s_lshl_b32 %s, %s, 4" % (sTc, sTc))
        S("s_add_u32 %s, %s, %s" % (sTc, sTc, sRB))
        S("s_lshl_b32 %s, %s, 1" % (sTb, sTc))
        S("s_add_u32 %s, %s, %s" % (sTb, sTb, sRW))
        S("s_lshl_b32 %s, %s, 10" % (sTb, sTb))
        S("s_add_u32 %s, %s, 0x%x" % (sTb, sTb, WS_KVP))
        S("s_lshl_b32 %s, %s, 7" % (sTc, sTc))
        S("s_add_u32 %s, %s, 0x%x" % (sTc, sTc, WS_Z))

        def xbar():
            G.waitlg("kx")
            G("s_barrier")
        S(xbar)
        S(("ds_read_b128 %s, %s" % (vr(KD + 4, 4), a1), "kr"))
        S(("ds_read_b32 v%d, %s" % (ZD + 1, a3), "kr"))
        S(("@skip", 3))
        S(lambda: G.waitlg("kr"))
        for i in range(4):
            S("v_add_f32 v%d, v%d, v%d" % (KD + i, KD + i, KD + 4 + i))
        S("v_add_f32 v%d, v%d, v%d" % (ZD, ZD, ZD + 1))
        S(("buffer_store_dwordx4 %s, %s, %s, %s offen sc1" % (vr(KD, 4), vL16, SRD_WS, sTb), "pub1"))
        S(("buffer_store_dword v%d, %s, %s, %s offen sc1" % (ZD, vS4, SRD_WS, sTc), "pub1"))
        S(gstore)
        S(lambda: G.fstamp(2, 0))
        S(lambda: G.signal_when("pub1", pub1_signal, CFG["sigK"]))
    if not CFG["ovl"]:
        G.flush_side()
    G.stamp(4)

    for g in range(32):
        if g == 3:
            G.init_gate()
        if g == 29:
            G.poll_issue(sPollH, sCntH)
            if isQ:
                G.poll_issue(sPollG, sCntGq)
                G.poll_issue(sPoll, sCntKV)
        if (g + LAG2) % per == 0:
            i = (g + LAG2) // per
            if i * per < 32:
                G.need(*[("c2", c) for c in range(i * per // 4, (i + 1) * per // 4)])
            G.barrier("C%d" % i)
        rd = reads2(g + LAG2) if g + LAG2 < 32 else []
        G.waitlg(("r2", g))
        fb = FR2 + ((g + LAG2) % NB2) * FS2
        jobs = [(0, 0), (0, 1)] if isQ else [(0, 0), (0, 1), (1, 0)]
        for n, (tl, R) in enumerate(jobs):
            d = vr(ACC2 + n * 16, 16)
            cin = d if g > 0 else ("0" if isQ else vr(BIAS + tl * 16, 16))
            G("v_mfma_f32_32x32x16_bf16 %s, %s, %s, %s" % (d, vr(fb + tl * 4, 4), ar((g * 2 + R) * 4, 4), cin))
            k0 = n * len(rd) // len(jobs) if isQ else 2 * n
            k1 = (n + 1) * len(rd) // len(jobs) if isQ else 2 * n + 2
            for y in rd[k0:k1]:
                G(*y)
            G.gap(CFG["side2Q" if isQ else "side2K"], CFG["rate2"] / 100.0)
    G.barrier("C%d" % (32 // per + 1))
    G.fstamp(2, 2)
    G.stamp(6)

    def w2reads(s, dst):
        k = (s % 18) // 2
        u = ulist[k][0]
        out = []
        for T in range(2):
            for j4 in range(2):
                out.append(("ds_read_b64_tr_b16 %s, %s offset:%d" % (dst(T * 4 + j4 * 2), vW2r[u // 4], (u % 4) * UNIT + (s & 1) * 2048 + j4 * 1024 + T * 512), ("wr", s)))
        return out

    ndrained = [0]

    def drain():
        k = ndrained[0]
        if k > 9:
            return
        ndrained[0] += 1
        if k < 9:
            G.need(("w2", 2 * k), ("w2", 2 * k + 1))
            for s in (2 * k, 2 * k + 1):
                for x in w2reads(s, lambda o, s=s: ar(s * 8 + o, 2)):
                    G(*x)
        if k > 0:
            G.waitlg(("wr", 2 * k - 1))
            G.ev.add("D%d" % (k - 1))

    def pub2_signal():
        G.signal(sCntSig, 2)
        G.fstamp(2, 9)

    NRING = 28
    RING = 144
    AL = [(s, R) for s in range(26) for R in range(2)] + [(26, 0), (27, 0), (26, 1), (27, 1)] + \
         [(s, 0) for s in range(28, 36)] + [(s, 1) for s in range(28, 36)]
    GO = TMP + 40
    GR = TMP + 16
    B2 = TMP + 20
    vRW = [TMP + i for i in range(8)]
    vRD = [TMP + 8 + i for i in range(2)]
    vO = TMP + 12
    vGr = TMP + 13
    vB2 = TMP + 14

    def hook_a(i):
        def f():
            if i == 0:
                G.fstamp(2, 7)
                G.gate(sPollH, sCntH, 0, 4)
                G.fstamp(2, 8)
            if i == 24:
                G.poll_issue(sPollH, sCntH)
                G.poll_issue(sPollG, sCntG)
            if i == 48:
                G.poll_issue(sPollH, sCntH)
            if i == 32:
                G.fstamp(2, 10)
                G.gate(sPollG, sCntG, 0, 32)
                G.gate(sPollH, sCntH, 8, 4, pending=False)
                G.fstamp(2, 11)
                assert "raddr" in G.ev
                G("s_lshl_b32 %s, %s, 8" % (sXs, sR2))
                G("s_add_u32 %s, %s, 0x%x" % (sXs, sXs, WS_G))
                G("buffer_load_dword v%d, %s, %s, %s offen sc1" % (GO, vS4, SRD_WS, sXs), "go")
                G("buffer_load_dword v%d, %s, %s, %s offen offset:128 sc1" % (GO + 2, vS4, SRD_WS, sXs), "go")
                G("buffer_load_dword v%d, v%d, %s, %s offen sc1" % (GR, vGr, SRD_WS, sXs), "go")
                G("buffer_load_dword v%d, v%d, %s, %s offen offset:128 sc1" % (GR + 1, vGr, SRD_WS, sXs), "go")
                G("global_load_dwordx4 %s, v%d, s[38:39]" % (vr(B2, 4), vB2), "go")
            if i == 56:
                G.fstamp(2, 12)
                G.gate(sPollH, sCntH, 16, 4)
                G.fstamp(2, 13)
        return f

    def push_a(i):
        s, R = AL[i]
        kind, u = steps[s]
        G.push(["s_add_u32 %s, %s, %d" % (sTa, sBH if kind == "h" else sBO, (u if kind == "h" else 112 + u) * UNIT)] if (i == 0 or AL[i - 1][0] != s) else [],
               "buffer_load_dwordx4 %s, %s, %s, %s offen offset:%d sc1" % (ar(RING + (i % NRING) * 4, 4), vA, SRD_WS, sTa, R * 1024),
               ("a", i), None if i < NRING else "M%d" % (i - NRING), hook_a(i))

    r2e = CFG["r2_earlyQ" if isQ else "r2_early"]
    s2 = 18
    for _ in range(2 * r2e):
        push_w2(s2, "D%d" % ((s2 - 18) // 2))
        s2 += 1
    for i in range(0, len(AL), 2):
        push_a(i)
        push_a(i + 1)
        if s2 < 36:
            push_w2(s2, "D%d" % ((s2 - 18) // 2))
            s2 += 1

    EV = CFG["ev"]

    def mix(L, ndr):
        marks = {(j + 1) * len(L) // (ndr + 1) for j in range(ndr)} if ndr else set()
        for i, x in enumerate(L):
            if i in marks:
                drain()
                G.fill(1)
            G.emit_item(x)
            if i % EV == EV - 1:
                G.fill(1)

    G.flush_side()
    if not isQ:
        L, sts = [], []
        for n, (R, so) in enumerate(((0, sUA), (1, sUA), (0, sUB))):
            o, st = relu2_store(ACC2 + n * 16, vSt[R], so, "pub2")
            L += o
            sts += st
        drain()
        mix(L, 4)
        if G.psig:
            G.waitvm("pub1")
        for x in sts:
            G.emit_item(x)
        G.signal_when("pub2", pub2_signal, CFG["sig2"])
        G.fstamp(2, 3)
    else:
        L = []
        for R in range(2):
            L += phi_pack(ACC2 + R * 16, TMP)
        GQ = TMP + 40
        PK = ACC
        ZL = TMP
        L.append("v_lshlrev_b32 %s, 2, %s" % (t4, vL))
        L.append("s_lshl_b32 %s, %s, 11" % (sTc, sW))
        L.append("s_add_u32 %s, %s, %d" % (sTc, sTc, MISC))
        L.append("v_add_u32 %s, %s, %s" % (t0, sTc, vL16))
        L.append("v_xor_b32 %s, 0x1000, %s" % (t1, t0))
        L.append("s_lshl_b32 %s, %s, 8" % (sTc, sW))
        L.append("s_add_u32 %s, %s, %d" % (sTc, sTc, MISC + 8192))
        L.append("v_add_u32 %s, %s, %s" % (t2, sTc, t4))
        L.append("v_and_b32 %s, 16, %s" % (t3, vL))
        L.append("v_cmp_eq_u32 vcc, 0, %s" % t3)
        L.append("v_xor_b32 %s, 16, %s" % (t3, t3))
        L.append("v_lshrrev_b32 v245, 5, %s" % vL)
        L.append("v_lshl_add_u32 %s, v245, 2, %s" % (t3, t3))
        L.append("s_lshl_b32 %s, %s, 8" % (sTc, sCW))
        L.append("s_add_u32 %s, %s, %d" % (sTc, sTc, MISC + 8192))
        L.append("v_lshl_add_u32 %s, %s, 2, %s" % (t3, t3, sTc))
        L.append("s_lshl_b32 %s, %s, 1" % (sTb, sP))
        L.append("s_add_u32 %s, %s, %s" % (sTb, sTb, sCW))
        L.append("s_lshl_b32 %s, %s, 15" % (sTc, sTb))
        L.append("s_add_u32 %s, %s, %d" % (sUA, sTc, 112 * UNIT))
        L.append("s_add_u32 %s, %s, %d" % (sUB, sTc, 113 * UNIT))
        L.append("s_lshl_b32 %s, %s, 1" % (sTc, sTb))
        L.append("s_add_u32 %s, %s, %s" % (sTc, sTc, sRW))
        L.append("s_lshl_b32 %s, %s, 14" % (sTb, sTc))
        L.append("s_add_u32 %s, %s, 0x%x" % (sTb, sTb, WS_KVP))
        L.append("s_lshl_b32 %s, %s, 10" % (sTc, sTc))
        L.append("s_add_u32 %s, %s, 0x%x" % (sTc, sTc, WS_Z))
        L.append("s_lshl_b32 s33, %s, 2" % sRB)
        L.append("s_add_u32 s33, s33, %s" % sW)
        L.append("s_lshl_b32 s33, s33, 7")
        L.append("s_add_u32 s33, s33, 0x%x" % WS_G)
        L.append("s_xor_b32 s34, s33, 0x80")
        drain()
        mix(L, 5)
        if G.psig:
            G.waitvm("pub1")
        G.fill(CFG["qpre"])
        G.fstamp(2, 3)
        G.gate(sPollG, sCntGq, 0, 32)
        G.gate(sPoll, sCntKV, 0, 32, pending=False)
        G.fstamp(2, 4)
        for i in range(16):
            if i and i % 4 == 0:
                G("s_add_u32 %s, %s, 4096" % (sTb, sTb))
            G("buffer_load_dwordx4 %s, %s, %s, %s offen offset:%d sc1" % (vr(PK + i * 4, 4), vL16, SRD_WS, sTb, (i % 4) * 1024), ("kvp", i // 8))
        for i in range(4):
            G("buffer_load_dword v%d, %s, %s, %s offen offset:%d sc1" % (ZL + i, t4, SRD_WS, sTc, i * 256), "kvz")
        G("buffer_load_dword v%d, %s, %s, s33 offen sc1" % (GQ, vS4, SRD_WS), "kvz")
        G("buffer_load_dword v%d, %s, %s, s34 offen sc1" % (GQ + 1, vS4, SRD_WS), "kvz")
        drain()
        drain()
        G.fill(4)
        G.waitvm(("kvp", 0))
        for st in (16, 8):
            for i in range(0, st, 2):
                G("v_pk_add_f32 %s, %s, %s" % (vr(PK + i, 2), vr(PK + i, 2), vr(PK + st + i, 2)))
        G.fill(2)
        G.waitvm(("kvp", 1))
        for st in (16, 8):
            for i in range(0, st, 2):
                G("v_pk_add_f32 %s, %s, %s" % (vr(PK + 32 + i, 2), vr(PK + 32 + i, 2), vr(PK + 32 + st + i, 2)))
        G.waitvm("kvz")
        G.fstamp(2, 5)
        G("v_add_f32 v%d, v%d, v%d" % (ZL, ZL, ZL + 1))
        G("v_add_f32 v%d, v%d, v%d" % (ZL + 2, ZL + 2, ZL + 3))
        G("v_add_f32 v%d, v%d, v%d" % (ZL, ZL, ZL + 2))
        G("v_mov_b32 v%d, v%d" % (ZL + 1, ZL))
        for i in range(0, 8, 2):
            G("v_pk_add_f32 %s, %s, %s" % (vr(PK + i, 2), vr(PK + i, 2), vr(PK + 32 + i, 2)))
        G("v_permlane32_swap_b32 v%d, v%d" % (ZL, ZL + 1))
        G("ds_write_b128 %s, %s" % (t0, vr(PK, 4)), "qx")
        G("v_add_f32 v%d, v%d, v%d" % (ZL, ZL, ZL + 1))
        G("ds_write_b128 %s, %s offset:1024" % (t0, vr(PK + 4, 4)), "qx")
        G("ds_write_b32 %s, v%d" % (t2, ZL), "qx")
        G.fill(2)
        G.waitlg("qx")
        G.barrier("BQ")
        G("ds_read_b128 %s, %s" % (vr(PK + 8, 4), t1), "qr")
        G("ds_read_b128 %s, %s offset:1024" % (vr(PK + 12, 4), t1), "qr")
        G("ds_read_b128 %s, %s" % (vr(PK + 16, 4), t3), "qr")
        G("ds_read_b128 %s, %s offset:32" % (vr(PK + 20, 4), t3), "qr")
        G("ds_read_b128 %s, %s offset:512" % (vr(PK + 24, 4), t3), "qr")
        G("ds_read_b128 %s, %s offset:544" % (vr(PK + 28, 4), t3), "qr")
        G.fill(2)
        G.waitlg("qr")
        for i in range(0, 8, 2):
            G("v_pk_add_f32 %s, %s, %s" % (vr(PK + i, 2), vr(PK + i, 2), vr(PK + 8 + i, 2)))
            G("v_pk_add_f32 %s, %s, %s" % (vr(PK + 16 + i, 2), vr(PK + 16 + i, 2), vr(PK + 24 + i, 2)))
        for i in range(4):
            G("v_cvt_pk_bf16_f32 v%d, v%d, v%d" % (PK + i, PK + 2 * i, PK + 2 * i + 1))
            G("v_cvt_pk_bf16_f32 v%d, v%d, v%d" % (PK + 16 + i, PK + 16 + 2 * i, PK + 16 + 2 * i + 1))
        A0, A1 = FR, FR + 4
        for i in range(4):
            G("v_cndmask_b32 v%d, v%d, v%d, vcc" % (A0 + i, PK + 16 + i, PK + i))
        for i in range(4):
            G("v_cndmask_b32 v%d, v%d, v%d, vcc" % (A1 + i, PK + i, PK + 16 + i))
        OD = BIAS
        for hd in range(2):
            for R in range(2):
                G("v_mfma_f32_32x32x16_bf16 %s, %s, %s, 0" % (vr(OD + (hd * 2 + R) * 16, 16), vr(A1 if hd else A0, 4), vr(ACC2 + R * 16 + hd * 4, 4)))
                G.fill(1)
        sts = []
        for hd in range(2):
            for R in range(2):
                b = OD + (hd * 2 + R) * 16
                num, den = (b + 8, b) if hd else (b, b + 8)
                G("v_add_f32 v%d, %s, v%d" % (den, cEPS, den))
                G("v_rcp_f32 v%d, v%d" % (den, den))
                G("v_mul_f32 v%d, v%d, v%d" % (den, den, GQ + R))
                for i in range(4):
                    G("v_pk_mul_f32 %s, %s, %s op_sel_hi:[1,0]" % (vr(num + 2 * i, 2), vr(num + 2 * i, 2), vr(den, 2)))
                for i in range(4):
                    G("v_cvt_pk_bf16_f32 v%d, v%d, v%d" % (ACC2 + 32 + (hd * 2 + R) * 4 + i, num + 2 * i, num + 2 * i + 1))
                G("buffer_store_dwordx4 %s, %s, %s, %s offen sc1" % (vr(ACC2 + 32 + (hd * 2 + R) * 4, 4), vSt[R], SRD_WS, sUB if hd else sUA), "pub2")
        G.signal_when("pub2", pub2_signal, CFG["sig2"])
        G.fstamp(2, 6)
    while ndrained[0] <= 9:
        drain()
        G.fill(2)

    AH = 2 * CFG["ahead"]
    assert AH + 2 <= NRING
    S = G.side.append
    S("v_and_b32 %s, 15, %s" % (t0, vL))
    S("v_lshrrev_b32 %s, 5, %s" % (t1, vL))
    S("v_xor_b32 %s, %s, %s" % (t1, t1, t0))
    S("v_lshlrev_b32 %s, 4, %s" % (t1, t1))
    S("v_lshl_add_u32 %s, %s, 8, %s" % (t1, t0, t1))
    S("v_bfe_u32 %s, %s, 4, 1" % (t0, vL))
    S("v_lshl_add_u32 %s, %s, 14, %s" % (t1, t0, t1))
    S("v_add_u32 v%d, %s, %s" % (vRW[0], sM0w, t1))
    S("v_lshrrev_b32 %s, 3, %s" % (t0, vL))
    S("v_and_b32 %s, 7, %s" % (t1, vL))
    S("s_lshl_b32 %s, %s, 5" % (sTc, sW))
    S("v_lshl_add_u32 v%d, %s, 2, %s" % (vGr, t0, sTc))
    S("s_lshl_b32 %s, %s, 7" % (sUB, sCT))
    S("v_lshl_add_u32 v%d, %s, 4, %s" % (vB2, t1, sUB))
    S(lambda: G.ev.add("raddr"))
    for i in range(1, 8):
        S("v_xor_b32 v%d, %d, v%d" % (vRW[i], i << 5, vRW[0]))
    S("s_lshl_b32 %s, %s, 3" % (sTc, sCW))
    S("v_add_u32 %s, %s, %s" % (t3, sTc, t0))
    S("v_lshlrev_b32 %s, 1, %s" % (t2, t1))
    S("v_xor_b32 %s, %s, %s" % (t2, t2, t3))
    S("v_lshlrev_b32 %s, 4, %s" % (t2, t2))
    S("v_lshl_add_u32 %s, %s, 8, %s" % (t2, t3, t2))
    S("s_lshl_b32 %s, %s, 14" % (sTc, sRW))
    S("v_add_u32 v%d, %s, %s" % (vRD[0], sTc, t2))
    S("v_xor_b32 v%d, 16, v%d" % (vRD[1], vRD[0]))
    S("v_lshlrev_b32 %s, 4, %s" % (t1, t1))
    S("v_lshl_add_u32 v%d, %s, 10, %s" % (vO, t0, t1))
    S("s_lshl_b32 %s, %s, 3" % (sUA, sR2))
    S("s_add_u32 %s, %s, %s" % (sUA, sUA, sW))
    S("s_lshl_b32 %s, %s, 13" % (sUA, sUA))
    S("s_add_u32 %s, %s, %s" % (sUA, sUA, sUB))
    S("s_add_u32 %s, %s, 0x8000" % (sUB, sUA))

    BG = BIAS

    def gprep():
        out = [lambda: G.waitvm("go")]
        for a, b, c in ((GO, GO + 2, GO + 1), (GR, GR + 1, GR + 2)):
            out.append("v_sub_f32 v%d, 1.0, v%d" % (a, a))
            out.append("v_sub_f32 v%d, 1.0, v%d" % (b, b))
            out.append("v_cvt_pk_bf16_f32 v%d, v%d, v%d" % (c, a, b))
            out.append("v_lshlrev_b32 v%d, 16, v%d" % (a, c))
            out.append("v_and_b32 v%d, %s, v%d" % (b, vMaskHi, c))
        for i in range(4):
            out.append("v_lshlrev_b32 v%d, 16, v%d" % (BG + 16 + 2 * i, B2 + i))
            out.append("v_and_b32 v%d, %s, v%d" % (BG + 16 + 2 * i + 1, vMaskHi, B2 + i))
        for R in range(2):
            for i in range(8):
                out.append("v_mul_f32 v%d, v%d, v%d" % (BG + R * 8 + i, GR + R, BG + 16 + i))
        return out

    def wfrag(s, T):
        if s < 18:
            return ar(s * 8 + T * 4, 4)
        if s >= 28:
            return ar((s - 28) * 8 + T * 4, 4)
        return vr(FR + (s % 3) * 8 + T * 4, 4)

    def jit(s):
        G.need(("w2", s))
        if s >= 28:
            return w2reads(s, lambda o: ar((s - 28) * 8 + o, 2))
        fb = FR + (s % 3) * 8
        return w2reads(s, lambda o: vr(fb + o, 2))

    def scale(R):
        out = []
        for T in range(2):
            b = ACC + (T * 2 + R) * 16
            for i in range(8):
                out.append("v_pk_mul_f32 %s, %s, %s op_sel_hi:[1,0]" % (vr(b + 2 * i, 2), vr(b + 2 * i, 2), vr(GO + 2 * R, 2)))
        return out

    def red_write(R):
        return [("ds_write_b128 v%d, %s offset:%d" % (vRW[T * 4 + m], vr(ACC + (T * 2 + R) * 16 + 4 * m, 4), R * 32768), ("rw", R))
                for T in range(2) for m in range(4)]

    RD = ACC2

    def red_read(R):
        return [("ds_read_b128 %s, v%d offset:%d" % (vr(RD + src * 8 + e * 4, 4), vRD[e], R * 32768 + src * 4096), ("rd", R, src // 2))
                for src in range(4) for e in range(2)]

    def red_fin(R):
        b = RD
        out = [lambda: G.waitlg(("rd", R, 0))]
        for i in range(0, 8, 2):
            out.append("v_pk_add_f32 %s, %s, %s" % (vr(b + i, 2), vr(b + i, 2), vr(b + 8 + i, 2)))
        for i in range(0, 8, 2):
            out.append("v_pk_add_f32 %s, %s, %s" % (vr(b + i, 2), vr(b + i, 2), vr(BG + R * 8 + i, 2)))
        out.append(lambda: G.waitlg(("rd", R, 1)))
        for i in range(0, 8, 2):
            out.append("v_pk_add_f32 %s, %s, %s" % (vr(b + 16 + i, 2), vr(b + 16 + i, 2), vr(b + 24 + i, 2)))
        for i in range(0, 8, 2):
            out.append("v_pk_add_f32 %s, %s, %s" % (vr(b + i, 2), vr(b + i, 2), vr(b + 16 + i, 2)))
        for i in range(4):
            out.append("v_cvt_pk_bf16_f32 v%d, v%d, v%d" % (b + 32 + 4 * R + i, b + 2 * i, b + 2 * i + 1))
        out.append(("buffer_store_dwordx4 %s, v%d, %s, %s offen%s" % (vr(b + 32 + 4 * R, 4), vO, SRD_OUT, sUB if R else sUA, ("", " sc1", " nt", " sc0 sc1")[CFG["outsc"]]), "out"))
        return out

    jit_at = {}
    for s in range(18, 28):
        jit_at.setdefault(2 * (s - 2), []).append(s)
    for s in range(28, 36):
        jit_at.setdefault(2 * (s - 9) + 1, []).append(s)
    G.flush_until(("a", min(AH, 8)))
    for i, (s, R) in enumerate(AL):
        rd = []
        for sj in jit_at.get(i, []):
            rd += jit(sj)
        if i == 36:
            G.side += gprep()
        if i == 54:
            G.flush_side()
            G.side += [("@skip", 2)] + scale(0)
        if i == 56:
            G.flush_side()
            G.side += [("@skip", 2)] + scale(1)
        if i == 64:
            G.flush_side()

            def rbar():
                G.waitlg(("rw", 0))
                G("s_barrier")
            G.side += [("@skip", 2)] + red_write(0) + [("@skip", 2), rbar] + red_read(0) + [("@skip", 2)] + red_fin(0)
        G.need(("a", i))
        if s >= 18:
            G.waitlg(("wr", s))
        for T in range(2):
            d = vr(ACC + (T * 2 + R) * 16, 16)
            cin = d if s > 0 else "0"
            G("v_mfma_f32_32x32x16_bf16 %s, %s, %s, %s" % (d, wfrag(s, T), ar(RING + (i % NRING) * 4, 4), cin))
            for y in rd[2 * T:2 * T + 2]:
                G(*y)
            for _ in range(2):
                if any(x[2][0] == "a" and x[2][1] <= i + AH for x in G.q):
                    G.fill(1)
            G.gap(8 if i in (54, 55) else 4)
        G.ev.add("M%d" % i)
    assert not G.q and not G.psig
    G.fstamp(2, 14)
    G.flush_side()
    for x in red_write(1):
        G(*x)
    G.waitlg(("rw", 1))
    G("s_barrier")
    for x in red_read(1):
        G(*x)
    for x in red_fin(1):
        G.emit_item(x)
    if CFG["stamps"]:
        G.waitvm("out")
        G.fstamp(2, 15)
        G.stamp(15)
        G("v_writelane_b32 %s, %s, 16" % (vStamp, sTO))
        if CFG.get("fine", 0):
            for i in range(16):
                G("v_writelane_b32 %s, s%d, %d" % (vStamp, STMP + 2 * i, 48 + i))
        G("s_lshl_b32 %s, %s, 4" % (sTc, sRB))
        G("s_add_u32 %s, %s, %s" % (sTc, sTc, sCG))
        G("s_lshl_b32 %s, %s, 2" % (sTc, sTc))
        G("s_add_u32 %s, %s, %s" % (sTc, sTc, sW))
        G("s_lshl_b32 %s, %s, 8" % (sTc, sTc))
        G("s_add_u32 %s, %s, 0x%x" % (sTc, sTc, WS_DBG))
        G("v_lshlrev_b32 %s, 2, %s" % (t0, vL))
        G("buffer_store_dword %s, %s, %s, %s offen" % (vStamp, t0, SRD_WS, sTc))
    G("s_endpgm")
    return G


def main():
    hdr = open("cdna_kernels/%s.s.ref" % NAME).read().split("\n")
    head = []
    for line in hdr:
        if line.startswith("; @launch"):
            head.append("; @launch grid=(256,1,1) block=(256,1,1) lds=163840")
        elif line.startswith(";"):
            head.append(line)
        else:
            break
    P = prologue()
    body = []
    K = build(False)
    Q = build(True)
    def filt(l):
        if CFG.get("nomfma", 0):
            l = [x for x in l if x.kind != "mfma"]
        if CFG.get("noload", 0):
            l = [x for x in l if not (x.kind == "vmem" and x.op.startswith("buffer_load"))]
        if CFG.get("nostore", 0):
            l = [x for x in l if not (x.kind == "vmem" and x.tag in ("pub1", "pub2"))]
        return l
    kl = pad_hazards(filt(resolve(P.l + K.l)))
    ql = pad_hazards(filt(resolve(P.l + Q.l)))
    idx = [i for i, x in enumerate(ql) if x.text == "L_Q:"][0]
    ql = ql[idx:]
    s = "\n".join(head) + "\n"
    s += '.amdgcn_target "amdgcn-amd-amdhsa--gfx950"\n.text\n.globl %s_kernel\n.p2align 8\n.type %s_kernel,@function\n%s_kernel:\n' % (NAME, NAME, NAME)
    s += render(kl) + "\n.p2align 6\n" + render(ql) + "\nL_end:\n    s_endpgm\n"
    s += """.section .rodata,"a"
.p2align 6
.amdhsa_kernel %s_kernel
  .amdhsa_next_free_vgpr 512
  .amdhsa_next_free_sgpr 102
  .amdhsa_accum_offset 256
  .amdhsa_group_segment_fixed_size 0
  .amdhsa_kernarg_size 96
  .amdhsa_user_sgpr_count 2
  .amdhsa_user_sgpr_kernarg_segment_ptr 1
  .amdhsa_system_sgpr_workgroup_id_x 1
  .amdhsa_float_denorm_mode_32 3
  .amdhsa_float_denorm_mode_16_64 3
.end_amdhsa_kernel
""" % NAME
    open(sys.argv[1], "w").write(s)
    print("wrote", sys.argv[1], "instr K", len(kl), "Q", len(ql))


if __name__ == "__main__":
    main()
```

```python
import sys
from asmdsl import *

NAME = "gated_mix__linear_attn_block__dense_activation_squared_relu__prompt"

CFG = dict(rate1=60, dist=2, qpre=8, ev=12, stamps=0, rot=2, r2_early=2, r2_earlyQ=6, ahead=8, pf=2, ovl=1, outsc=0, side1=2, side2K=5, side2Q=4, pk=1, sigK=14, sigQ=14, sig2=12, rate2=42)
for a in sys.argv[2:]:
    k, v = a.split("=")
    CFG[k] = int(v)

A_GRP = 0x250000
A_OFF = 0x10000
WS_KVP = 0x950000
WS_Z = 0x9D0000
WS_G = 0x9E0000
WS_CNT = 0x9F0000
WS_DBG = 0xA00000
WS_SIZE = 0x1000000
UNIT = 16384
MISC = 9 * UNIT

SRD_X, SRD_QKV, SRD_W1, SRD_WO, SRD_W2, SRD_WS, SRD_OUT, SRD_GATE = [("s[%d:%d]" % (b, b + 3)) for b in range(4, 36, 4)]
WSP = "s[24:25]"
sW, sRW, sCW, sRB, sCG, sP, sR2, sCT = ["s%d" % i for i in range(42, 50)]
sXs, sWs, sRot, sTa, sTb, sM0w, sBH, sBO = ["s%d" % i for i in range(50, 58)]
sCntSig, sCntKV, sCntGsig, sCntH, sCntG, sCntGq = ["s%d" % i for i in range(58, 64)]
STMP = 64
sPollH, sPoll, sTO, sTc = "s96", "s97", "s98", "s99"
sPollG = "s32"
sUA, sUB = "s3", "s2"

vL = "v1"
vXs = ["v%d" % i for i in range(2, 6)]
vW1 = ["v%d" % i for i in range(6, 10)]
vWp2 = ["v%d" % i for i in range(10, 14)]
vXr = [["v%d" % (14 + R * 4 + t) for t in range(4)] for R in range(2)]
vWr = "v22"
vP2r = ["v23", "v24", "v25", "v26"]
vW2s = ["v27", "v28"]
vW2r = ["v29", "v30", "v31"]
vSt = ["v32", "v33"]
vL16, vS4, vA, vGoff = "v34", "v35", "v36", "v37"
vGv = 38
FR = 40
ACC = 64
ACC2 = 128
BIAS = 176
TMP = 208
vStamp = "v255"
vMaskHi = "v254"


def vr(b, n=1):
    return "v%d" % b if n == 1 else "v[%d:%d]" % (b, b + n - 1)


def ar(b, n=1):
    return "a%d" % b if n == 1 else "a[%d:%d]" % (b, b + n - 1)


class Gen(Prog):
    def __init__(self, pfx):
        super().__init__()
        self.q = []
        self.ev = set()
        self.pre_done = False
        self.pfx = pfx
        self.side = []
        self.credit = 0.0
        self.vml = []
        self.psig = None
        self.nl = 0

    def __call__(self, text, tag=None):
        Prog.__call__(self, text, tag)
        if self.l[-1].kind == "vmem":
            self.vml.append(tag)
            if self.psig and len(self.vml) - 1 - self.lastidx(self.psig[0]) >= self.psig[2]:
                self.waitvm(self.psig[0])
        return self

    def lastidx(self, tag):
        return max(i for i, t in enumerate(self.vml) if t == tag)

    def waitvm(self, *tags):
        Prog.waitvm(self, *tags)
        if self.psig and max(self.lastidx(t) for t in tags) >= self.lastidx(self.psig[0]):
            fn = self.psig[1]
            self.psig = None
            fn()

    def signal_when(self, tag, fn, maxyounger):
        assert self.psig is None
        self.psig = (tag, fn, maxyounger)

    def lab(self, n):
        self.nl += 1
        return "L%s_%s%d" % (self.pfx, n, self.nl)

    def push(self, pre, dma, tag, event=None, hook=None):
        self.q.append((pre, dma, tag, event, hook))

    def fill(self, n=1):
        for _ in range(n):
            if not self.q:
                return
            pre, dma, tag, event, hook = self.q[0]
            if event is not None and event not in self.ev:
                return
            self.q.pop(0)
            if hook:
                hook()
            if not self.pre_done:
                for x in pre:
                    self(x)
            self(dma, tag)
            self.pre_done = False
            if self.q:
                for x in self.q[0][0]:
                    self(x)
                self.pre_done = True

    def flush_until(self, tag):
        while any(x[2] == tag for x in self.q):
            n = len(self.q)
            self.fill(1)
            if len(self.q) == n:
                raise ValueError("queue blocked on event %r while flushing to %r" % (self.q[0][3], tag))

    def need(self, *tags):
        for t in tags:
            self.flush_until(t)
        self.waitvm(*tags)

    def barrier(self, name):
        if self.side and isinstance(self.side[0], tuple) and self.side[0][0] == "@bar":
            self.waitlg(self.side[0][1])
            self.side.pop(0)
        self("s_barrier")
        self.ev.add(name)

    def emit_item(self, x):
        if isinstance(x, tuple):
            self(x[0], x[1])
            return 1
        if callable(x):
            x()
            return 3
        self(x)
        if x.startswith("v_mfma"):
            return 99
        return 2 if x.startswith(TRANS) else 1

    def gap(self, budget, rate=0.0):
        self.credit += rate
        while self.credit >= 1.0:
            n = len(self.q)
            self.fill(1)
            self.credit -= 1.0
            if len(self.q) == n:
                self.credit = 0.0
        while budget > 0 and self.side:
            x = self.side[0]
            if isinstance(x, tuple) and x[0] == "@bar":
                return
            if isinstance(x, tuple) and x[0] == "@skip":
                if x[1] <= 1:
                    self.side.pop(0)
                else:
                    self.side[0] = ("@skip", x[1] - 1)
                return
            self.side.pop(0)
            budget -= self.emit_item(x)

    def flush_side(self, every=12):
        n = 0
        while self.side:
            x = self.side[0]
            if isinstance(x, tuple) and x[0] == "@bar":
                self.barrier("X%d" % len(self.l))
                continue
            self.side.pop(0)
            if isinstance(x, tuple) and x[0] == "@skip":
                continue
            self.emit_item(x)
            n += 1
            if n % every == 0:
                self.fill(1)

    def sprinkle(self, lines, every):
        for i, x in enumerate(lines):
            if isinstance(x, tuple):
                self(x[0], x[1])
            elif callable(x):
                x()
            else:
                self(x)
            if (i + 1) % every == 0:
                self.fill(1)

    def stamp(self, i):
        if CFG["stamps"] == 1 or (CFG["stamps"] == 2 and i in (0, 2, 3, 15)):
            self("s_memrealtime s[100:101]")
            self("s_waitcnt lgkmcnt(0)")
            self("v_writelane_b32 %s, s100, %d" % (vStamp, i))
            self("s_memtime s[100:101]")
            self("s_waitcnt lgkmcnt(0)")
            self("v_writelane_b32 %s, s100, %d" % (vStamp, 32 + i))

    def fstamp(self, grp, i):
        if CFG.get("fine", 0) == grp:
            self("%s s[%d:%d]" % ("s_memtime" if grp == 1 else "s_memrealtime", STMP + 2 * i, STMP + 2 * i + 1))

    def poll_issue(self, reg, off):
        self("s_mov_b32 %s, 0" % reg)
        self("s_atomic_add %s, %s, %s glc" % (reg, WSP, off))

    def gate(self, reg, off, shift, target, pending=True):
        top, done = self.lab("g"), self.lab("gd")
        if pending:
            self("s_waitcnt lgkmcnt(0)")
        self("%s:" % top)
        self("s_bfe_u32 %s, %s, 0x%x" % (sXs, reg, (8 << 16) | shift))
        self("s_cmp_ge_u32 %s, %d" % (sXs, target))
        self("s_cbranch_scc1 %s" % done)
        self("s_cmp_eq_u32 %s, 0" % sTO, "cond")
        self("s_cbranch_scc1 %s" % done, "cond")
        self("s_sub_u32 %s, %s, 1" % (sTO, sTO), "cond")
        self("s_mov_b32 %s, 0" % reg, "cond")
        self("s_atomic_add %s, %s, %s glc" % (reg, WSP, off), "cond")
        self("s_waitcnt lgkmcnt(0)", "cond")
        self("s_branch %s" % top, "cond")
        self("%s:" % done)

    def init_issue(self):
        self("s_load_dword %s, s[40:41], 0x0" % sPoll)

    def init_gate(self):
        top, done = self.lab("i"), self.lab("id")
        self("s_waitcnt lgkmcnt(0)")
        self("%s:" % top)
        self("s_cmp_lg_u32 %s, 0" % sPoll)
        self("s_cbranch_scc1 %s" % done)
        self("s_cmp_eq_u32 %s, 0" % sTO, "cond")
        self("s_cbranch_scc1 %s" % done, "cond")
        self("s_sub_u32 %s, %s, 1" % (sTO, sTO), "cond")
        self("s_sleep 8", "cond")
        self("s_atomic_add %s, s[40:41], 0x0 glc" % sPoll, "cond")
        self("s_waitcnt lgkmcnt(0)", "cond")
        self("s_branch %s" % top, "cond")
        self("%s:" % done)

    def signal(self, off, val):
        self("s_atomic_add %s, %s, %s" % ("s0" if val == 1 else "s1", WSP, off))


def bias_lines(dst, sbase):
    out = []
    for hh in range(2):
        if hh == 0:
            out.append("s_mov_b32 exec_hi, 0")
        else:
            out.append("s_mov_b32 exec_hi, -1")
            out.append("s_mov_b32 exec_lo, 0")
        for m in range(4):
            for e in range(2):
                s = "s%d" % (sbase + 4 * m + 2 * hh + e)
                out.append("v_lshlrev_b32_e64 v%d, 16, %s" % (dst + 4 * m + 2 * e, s))
                out.append("v_and_b32 v%d, %s, %s" % (dst + 4 * m + 2 * e + 1, s, vMaskHi))
    out.append("s_mov_b64 exec, -1")
    return out


def prologue():
    P = Prog()
    P("s_cmp_ge_u32 s2, 256")
    P("s_cbranch_scc1 L_end")
    if CFG.get("dbgt", 0):
        P("s_memrealtime s[100:101]")
        P("s_mov_b32 s95, s2")
    for srd, off in ((4, 0), (8, 8), (12, 32), (32, 64), (24, 88), (36, 40), (40, 80), (16, 16), (20, 48), (28, 72), (38, 56)):
        P("s_load_dwordx2 s[%d:%d], s[0:1], %d" % (srd, srd + 1, off))
    P("v_lshrrev_b32 v2, 6, v0")
    P("v_and_b32 %s, 63, v0" % vL)
    P("v_readfirstlane_b32 %s, v2" % sW)
    for srd, size in ((4, 2097152), (8, 1572864), (12, 1835008), (16, 524288), (20, 1835008), (24, WS_SIZE), (28, 2097152), (32, 1024)):
        P("s_mov_b32 s%d, 0x%x" % (srd + 2, size))
        P("s_mov_b32 s%d, 0x20000" % (srd + 3))
    P("s_and_b32 %s, s2, 7" % sTa)
    P("s_lshr_b32 %s, s2, 3" % sTb)
    P("s_and_b32 %s, %s, 1" % (sRB, sTa))
    P("s_lshl_b32 %s, %s, 3" % (sRB, sRB))
    P("s_and_b32 %s, %s, 7" % (sTc, sTb))
    P("s_add_u32 %s, %s, %s" % (sRB, sRB, sTc))
    P("s_lshr_b32 %s, %s, 1" % (sCG, sTa))
    P("s_lshl_b32 %s, %s, 2" % (sCG, sCG))
    P("s_lshr_b32 %s, %s, 3" % (sTc, sTb))
    P("s_add_u32 %s, %s, %s" % (sCG, sCG, sTc))
    P("s_lshr_b32 %s, %s, 1" % (sP, sCG))
    P("s_lshl_b32 %s, %s, 2" % (sR2, sTa))
    P("s_and_b32 %s, %s, 3" % (sTc, sTb))
    P("s_add_u32 %s, %s, %s" % (sR2, sR2, sTc))
    P("s_lshr_b32 %s, %s, 2" % (sCT, sTb))
    if CFG["rot"] == 0:
        P("s_mov_b32 %s, 0" % sRot)
    elif CFG["rot"] == 1:
        P("s_mov_b32 %s, %s" % (sRot, sTa))
    elif CFG["rot"] == 3:
        P("s_xor_b32 %s, %s, %s" % (sRot, sRB, sCG))
        P("s_and_b32 %s, %s, 1" % (sRot, sRot))
        P("s_lshl_b32 %s, %s, 2" % (sRot, sRot))
        P("s_add_u32 %s, %s, %s" % (sRot, sRot, sTa))
    elif CFG["rot"] == 4:
        P("s_add_u32 %s, %s, %s" % (sRot, sRB, sCG))
        P("s_lshl_b32 %s, %s, 1" % (sRot, sRot))
        P("s_bfe_u32 %s, %s, 0x10002" % (sTc, sCG))
        P("s_add_u32 %s, %s, %s" % (sRot, sRot, sTc))
    else:
        P("s_lshl_b32 %s, %s, 1" % (sRot, sCG))
        P("s_add_u32 %s, %s, %s" % (sRot, sRot, sRB))
        P("s_bfe_u32 %s, %s, 0x10002" % (sTc, sCG))
        P("s_add_u32 %s, %s, %s" % (sRot, sRot, sTc))
    P("s_lshr_b32 %s, %s, 1" % (sRW, sW))
    P("s_and_b32 %s, %s, 1" % (sCW, sW))
    P("s_lshl_b32 %s, %s, 12" % (sM0w, sW))
    P("s_mov_b32 %s, 0x8000" % sTO)
    P("v_lshlrev_b32 %s, 4, %s" % (vL16, vL))
    t0, t1, t2, t3 = "v240", "v241", "v242", "v243"
    P("v_lshrrev_b32 %s, 3, %s" % (t0, vL))
    P("v_lshrrev_b32 %s, 4, %s" % (t1, vL))
    P("v_and_b32 %s, 7, %s" % (t2, vL))
    P("v_xor_b32 %s, %s, %s" % (t2, t2, t1))
    P("v_lshlrev_b32 %s, 4, %s" % (t2, t2))
    P("s_lshl_b32 %s, %s, 15" % (sTc, sW))
    P("v_lshl_add_u32 %s, %s, 10, %s" % (t2, t0, t2))
    P("v_add_u32 %s, %s, %s" % (vXs[0], sTc, t2))
    P("v_xor_b32 %s, 64, %s" % (vXs[1], vXs[0]))
    P("v_add_u32 %s, 0x2000, %s" % (vXs[1], vXs[1]))
    P("v_add_u32 %s, 0x4000, %s" % (vXs[2], vXs[0]))
    P("v_add_u32 %s, 0x4000, %s" % (vXs[3], vXs[1]))
    P("s_bitcmp1_b32 %s, 0" % sCG)
    P("s_cbranch_scc1 L_Q")
    return P


def chunk_pre(c, pitch, with_x):
    pre = ["s_add_u32 %s, %s, %d" % (sTa, sRot, c), "s_and_b32 %s, %s, 7" % (sTa, sTa)]
    if with_x:
        pre += ["s_lshl_b32 %s, %s, 10" % (sXs, sRB), "s_add_u32 %s, %s, %s" % (sXs, sXs, sTa), "s_lshl_b32 %s, %s, 7" % (sXs, sXs)]
    pre += ["s_mul_i32 %s, %s, %d" % (sWs, sTa, 64 * pitch)]
    return pre


def build(isQ):
    G = Gen("Q" if isQ else "K")
    t0, t1, t2, t3, t4 = "v240", "v241", "v242", "v243", "v244"
    srdA, pitchA = (SRD_W1, 3584) if isQ else (SRD_QKV, 3072)
    srdB, pitchB = (SRD_QKV, 3072) if isQ else (SRD_W1, 3584)
    if isQ:
        G("L_Q:")
    if CFG["stamps"]:
        G("v_mov_b32 %s, 0" % vStamp)
    G("v_bfe_u32 %s, %s, 2, 2" % (t2, vL))
    G("s_lshl_b32 %s, %s, 4" % (sTc, sW))
    G("v_add_u32 %s, %s, %s" % (t2, sTc, t2))
    G("v_and_b32 %s, 3, %s" % (t3, vL))
    G("v_lshlrev_b32 %s, 4, %s" % (t3, t3))
    G("s_and_b32 %s, %s, 1" % (sTb, sP))
    if isQ:
        G("s_mul_i32 %s, %s, 448" % (sTa, sP))
        G("s_mul_i32 %s, %s, 192" % (sTc, sTb))
        G("s_add_u32 %s, %s, %s" % (sTa, sTa, sTc))
        G("v_lshl_add_u32 %s, %s, 6, %s" % (t4, t1, t3))
    else:
        G("s_lshl_b32 %s, %s, 7" % (sTa, sP))
        G("s_add_u32 %s, %s, 1024" % (sTa, sTa))
        G("v_and_b32 %s, 1, %s" % (t4, t1))
        G("v_lshl_add_u32 %s, %s, 6, %s" % (t4, t4, t3))
        G("v_lshrrev_b32 %s, 5, %s" % (t0, vL))
        G("v_lshl_add_u32 %s, %s, 10, %s" % (t4, t0, t4))
    G("v_mul_u32_u24 %s, %d, %s" % (vW1[0], pitchA, t2))
    G("v_add3_u32 %s, %s, %s, %s" % (vW1[0], vW1[0], t4, sTa))
    for i in range(1, 4):
        G("v_add_u32 %s, %d, %s" % (vW1[i], 4 * i * pitchA, vW1[0]))
    if isQ:
        G("s_lshl_b32 %s, %s, 6" % (sTc, sCW))
        G("s_add_u32 %s, %s, %s" % (sUA, sTa, sTc))
        G("s_add_u32 %s, %s, 128" % (sBH, sUA))
    else:
        G("s_mul_i32 %s, %s, 448" % (sTa, sP))
        G("s_xor_b32 %s, %s, 1" % (sTc, sTb))
        G("s_lshl_b32 %s, %s, 8" % (sTc, sTc))
        G("s_add_u32 %s, %s, %s" % (sTa, sTa, sTc))
        G("s_lshl_b32 %s, %s, 7" % (sTc, sCW))
        G("s_add_u32 %s, %s, %s" % (sUA, sTa, sTc))
        G("s_add_u32 %s, %s, 64" % (sBH, sTa))
        G("s_and_b32 %s, %s, 0xffffff80" % (sBO, sTa))
    G("s_lshl_b32 %s, %s, 4" % (sTc, sRB))
    G("s_add_u32 %s, %s, %s" % (sTc, sTc, sCG))
    G("s_lshl_b32 %s, %s, 2" % (sTc, sTc))
    G("s_add_u32 %s, %s, %s" % (sTc, sTc, sW))
    G("s_lshl_b32 %s, %s, 11" % (sPoll, sTc))
    G("s_lshl_b32 %s, %s, 3" % (sPollH, sTc))
    G("s_waitcnt lgkmcnt(0)")
    G("s_mov_b32 s0, 1")
    G("s_mov_b32 s1, 0x%x" % (0x10000 if isQ else 0x100))
    if not isQ:
        G("s_or_b32 %s, s2, %s" % (sTc, sW))
        G("s_cmp_lg_u32 %s, 0" % sTc)
        G("s_cbranch_scc1 LK_noinit")
        G("v_lshlrev_b32 v245, 8, %s" % vL, "cond")
        G("v_mov_b32 v246, 0", "cond")
        G("s_mov_b32 %s, 0x%x" % (sTc, WS_CNT), "cond")
        G.l.append(Ins("buffer_store_dword v246, v245, %s, %s offen sc1" % (SRD_WS, sTc), "cond"))
        G("s_add_u32 %s, %s, 0x4000" % (sTc, sTc), "cond")
        G.l.append(Ins("buffer_store_dword v246, v245, %s, %s offen sc1" % (SRD_WS, sTc), "cond"))
        G("s_add_u32 %s, %s, 0x4000" % (sTc, sTc), "cond")
        G.l.append(Ins("buffer_store_dword v246, v245, %s, %s offen sc1" % (SRD_WS, sTc), "cond"))
        G("LK_noinit:")
    GX0, GX1, GW = TMP, TMP + 4, TMP + 8
    G("buffer_load_dwordx4 %s, %s, %s, 0 offen" % (vr(GW, 4), vL16, SRD_GATE), "g")
    G("s_load_dwordx16 s[%d:%d], s[36:37], %s" % (STMP, STMP + 15, sUA))
    G("s_load_dwordx16 s[%d:%d], s[36:37], %s" % (STMP + 16, STMP + 31, sBH))

    def prefetch():
        pf = CFG["pf"]
        if not pf:
            return 0
        pv, pd = "v247", "v253"
        lw = [G.lab("pw") for _ in range(4)]
        le = G.lab("pe")

        def setsrd(b):
            G("s_mov_b32 s32, s%d" % b, "cond")
            G("s_mov_b32 s33, s%d" % (b + 1), "cond")
            G("s_mov_b32 s34, s%d" % (b + 2), "cond")
        G("s_lshl_b32 %s, s2, 6" % sTc)
        G("v_add_u32 %s, %s, %s" % (pv, sTc, vL))
        G("s_cmp_eq_u32 %s, 1" % sW)
        G("s_cbranch_scc1 %s" % lw[1])
        G("s_cmp_eq_u32 %s, 2" % sW, "cond")
        G("s_cbranch_scc1 %s" % lw[2], "cond")
        G("s_cmp_eq_u32 %s, 3" % sW, "cond")
        G("s_cbranch_scc1 %s" % lw[3], "cond")
        if pf == 1:
            setsrd(4)
        else:
            G("s_lshr_b32 %s, s2, 3" % sTc, "cond")
            G("s_mul_i32 %s, %s, 56" % (sTc, sTc), "cond")
            G("v_min_u32 %s, 55, %s" % (pv, vL), "cond")
            G("v_add_u32 %s, %s, %s" % (pv, sTc, pv), "cond")
            G("v_lshl_add_u32 %s, %s, 3, 3" % (pv, pv), "cond")
            setsrd(20)
        G("s_branch %s" % le, "cond")
        G("%s:" % lw[1])
        lo = G.lab("po")
        G("s_cmp_ge_u32 s2, 192", "cond")
        G("s_cbranch_scc1 %s" % lo, "cond")
        if pf == 2:
            G("v_lshrrev_b32 %s, 3, %s" % (pd, pv), "cond")
            G("v_lshl_add_u32 %s, %s, 4, %s" % (pv, pd, pv), "cond")
        setsrd(8)
        G("s_branch %s" % le, "cond")
        G("%s:" % lo)
        G("v_subrev_u32 %s, %d, %s" % (pv, 192 * 64, pv), "cond")
        setsrd(16)
        G("s_branch %s" % le, "cond")
        G("%s:" % lw[2])
        setsrd(12)
        G("s_branch %s" % le, "cond")
        G("%s:" % lw[3])
        setsrd(20)
        G("%s:" % le)
        G("v_lshlrev_b32 %s, 7, %s" % (pv, pv))
        G("buffer_load_dword %s, %s, %s, 0 offen" % (pd, pv, SRD_GATE), "pf")
        lw = [G.lab("pw") for _ in range(4)]
        le = G.lab("pe")
        G("s_cmp_eq_u32 %s, 1" % sW)
        G("s_cbranch_scc1 %s" % lw[1])
        G("s_cmp_eq_u32 %s, 2" % sW, "cond")
        G("s_cbranch_scc1 %s" % lw[2], "cond")
        G("s_cmp_eq_u32 %s, 3" % sW, "cond")
        G("s_cbranch_scc1 %s" % lw[3], "cond")
        G("v_mul_u32_u24 %s, 0x%x, %s" % (pv, A_GRP, vL), "cond")
        setsrd(24)
        G("s_branch %s" % le, "cond")
        G("%s:" % lw[1])
        G("s_lshl_b32 %s, %s, 16" % (sTc, sR2), "cond")
        G("v_lshl_add_u32 %s, %s, 26, %s" % (pv, vL, sTc), "cond")
        setsrd(28)
        G("s_branch %s" % le, "cond")
        G("%s:" % lw[2])
        G("s_lshr_b32 %s, s2, 3" % sTc, "cond")
        G("s_lshl_b32 %s, %s, 4" % (sTc, sTc), "cond")
        G("v_min_u32 %s, 15, %s" % (pv, vL), "cond")
        G("v_add_u32 %s, %s, %s" % (pv, sTc, pv), "cond")
        G("v_lshl_add_u32 %s, %s, 3, 3" % (pv, pv), "cond")
        G("v_lshlrev_b32 %s, 7, %s" % (pv, pv), "cond")
        setsrd(16)
        G("s_branch %s" % le, "cond")
        G("%s:" % lw[3])
        if pf == 1:
            G("s_lshr_b32 %s, s2, 3" % sTc, "cond")
            G("s_mul_i32 %s, %s, 56" % (sTc, sTc), "cond")
            G("v_min_u32 %s, 55, %s" % (pv, vL), "cond")
            G("v_add_u32 %s, %s, %s" % (pv, sTc, pv), "cond")
            G("v_lshl_add_u32 %s, %s, 3, 3" % (pv, pv), "cond")
            G("v_lshlrev_b32 %s, 7, %s" % (pv, pv), "cond")
            setsrd(20)
        else:
            G("v_lshlrev_b32 %s, 26, %s" % (pv, vL), "cond")
            setsrd(8 if isQ else 12)
        G("%s:" % le)
        G("buffer_load_dword %s, %s, %s, 0 offen" % (pd, pv, SRD_GATE), "pf")
        return 2

    for c in range(8):
        ev = None if c <= CFG["dist"] else "B%d" % (c - CFG["dist"])
        for i in range(4):
            pre = chunk_pre(c, pitchA, True) if i == 0 else []
            G.push(pre + ["s_add_u32 m0, %s, %d" % (sM0w, (c % 4) * UNIT + i * 1024)],
                   "buffer_load_dwordx4 %s, %s, %s offen lds" % (vXs[i], SRD_X, sXs), ("c1", c), ev)
            G.push(["s_add_u32 m0, %s, %d" % (sM0w, (4 + c % 4) * UNIT + i * 1024)],
                   "buffer_load_dwordx4 %s, %s, %s offen lds" % (vW1[i], srdA, sWs), ("c1", c), ev)
    npf = 0
    if CFG["pf"] == 1:
        npf = prefetch()
    G.fill(8)
    if CFG["pf"] == 2:
        npf = prefetch()
    G("buffer_load_dwordx4 %s, %s, %s, %s offen" % (vr(GX0, 4), vL16, SRD_X, sPoll), "g")
    G("buffer_load_dwordx4 %s, %s, %s, %s offen offset:1024" % (vr(GX1, 4), vL16, SRD_X, sPoll), "g")
    if not isQ:
        G("s_or_b32 %s, s2, %s" % (sTc, sW))
        G("s_cmp_lg_u32 %s, 0" % sTc)
        G("s_cbranch_scc1 LK_noinit2")
        G("s_waitcnt vmcnt(%d)" % (11 + npf), "cond")
        G("s_atomic_add s0, s[40:41], 0x0", "cond")
        G("LK_noinit2:")
    G.stamp(0)
    G("s_lshl_b32 %s, %s, 9" % (sUB, sBH))
    G("s_lshl_b32 %s, %s, 9" % (sUA, sUA))
    h, s32 = "v245", "v246"
    G("v_lshrrev_b32 %s, 5, %s" % (h, vL))
    G("v_and_b32 %s, 31, %s" % (s32, vL))
    G("v_lshlrev_b32 %s, 2, %s" % (vS4, s32))
    G("v_mov_b32 %s, 0xffff0000" % vMaskHi)
    G("v_bfe_u32 %s, %s, 1, 3" % (t0, s32))
    G("v_xor_b32 %s, %s, %s" % (t0, t0, h))
    G("v_lshlrev_b32 %s, 4, %s" % (t0, t0))
    G("v_lshl_add_u32 %s, %s, 7, %s" % (t0, s32, t0))
    G("v_add_u32 %s, %s, %s" % (vXr[0][0], sM0w, t0))
    G("v_xor_b32 %s, 0x1000, %s" % (vXr[1][0], vXr[0][0]))
    for R in range(2):
        for t in range(1, 4):
            G("v_xor_b32 %s, %d, %s" % (vXr[R][t], t << 5, vXr[R][0]))
    G("v_bfe_u32 %s, %s, 2, 2" % (t0, vL))
    G("v_lshlrev_b32 %s, 6, %s" % (t4, t0))
    G("v_and_b32 %s, 1, %s" % (t0, t1))
    G("v_lshl_add_u32 %s, %s, 5, %s" % (t4, t0, t4))
    G("v_lshrrev_b32 %s, 1, %s" % (t0, t3))
    G("v_add_u32 %s, %s, %s" % (t4, t4, t0))
    G("v_lshl_add_u32 %s, %s, 11, %s" % (t0, h, t4))
    G("s_lshl_b32 %s, %s, 8" % (sTc, sCW))
    G("s_add_u32 %s, %s, 0x10000" % (sTc, sTc))
    G("v_add_u32 %s, %s, %s" % (vWr, sTc, t0))
    G.fill(2)
    G("s_waitcnt lgkmcnt(0)")
    for x in bias_lines(BIAS, STMP) + bias_lines(BIAS + 16, STMP + 16):
        G(x)
    G.fill(2)

    S = G.side.append
    if isQ:
        S("v_lshl_add_u32 %s, %s, 10, %s" % (vP2r[0], h, t4))
        S("s_lshl_b32 %s, %s, 9" % (sTc, sCW))
        S("v_add_u32 %s, %s, %s" % (vP2r[0], sTc, vP2r[0]))
        S("v_add_u32 %s, 0x10000, %s" % (vP2r[1], vP2r[0]))
    else:
        S("s_lshl_b32 %s, %s, 1" % (sTc, sCW))
        S("s_add_u32 %s, %s, %s" % (sTc, sTc, sTb))
        S("s_lshl_b32 %s, %s, 8" % (sTc, sTc))
        S("v_add_u32 %s, %s, %s" % (vP2r[0], sTc, t0))
        S("v_add_u32 %s, 0x10000, %s" % (vP2r[1], vP2r[0]))
        S("s_add_u32 %s, %s, 1" % (sTc, sTb))
        S("s_lshl_b32 %s, %s, 8" % (sTc, sTc))
        S("v_add_u32 %s, %s, %s" % (vP2r[2], sTc, t0))
        S("v_add_u32 %s, 0x10000, %s" % (vP2r[3], vP2r[2]))
    S("v_lshl_add_u32 %s, %s, 8, %s" % (t0, h, t4))
    S("v_add_u32 %s, %s, %s" % (vW2r[0], sM0w, t0))
    S("v_add_u32 %s, 0x10000, %s" % (vW2r[1], vW2r[0]))
    S("v_add_u32 %s, 0x20000, %s" % (vW2r[2], vW2r[0]))
    if isQ:
        S("v_bfe_u32 %s, %s, 2, 3" % (t0, vL))
        S("s_lshl_b32 %s, %s, 4" % (sTc, sW))
        S("v_add_u32 %s, %s, %s" % (t0, sTc, t0))
        S("v_mul_u32_u24 %s, %d, %s" % (vWp2[0], pitchB, t0))
        S("v_lshl_add_u32 %s, %s, 6, %s" % (t4, h, t3))
        S("s_lshl_b32 %s, %s, 7" % (sTc, sP))
        S("v_add3_u32 %s, %s, %s, %s" % (vWp2[0], vWp2[0], t4, sTc))
        S("v_add_u32 %s, %d, %s" % (vWp2[1], 8 * pitchB, vWp2[0]))
    else:
        S("v_mul_u32_u24 %s, %d, %s" % (vWp2[0], pitchB, t2))
        S("v_lshl_add_u32 %s, %s, 6, %s" % (t4, t1, t3))
        S("v_add3_u32 %s, %s, %s, %s" % (vWp2[0], vWp2[0], t4, sBO))
        for i in range(1, 4):
            S("v_add_u32 %s, %d, %s" % (vWp2[i], 4 * i * pitchB, vWp2[0]))
    S("v_bfe_u32 %s, %s, 2, 3" % (t0, vL))
    S("v_lshl_add_u32 %s, %s, 6, %s" % (t4, h, t3))
    S("v_lshl_add_u32 %s, %s, 10, %s" % (t0, t0, t4))
    S("s_lshl_b32 %s, %s, 7" % (sTc, sCT))
    S("v_add_u32 %s, %s, %s" % (vW2s[0], sTc, t0))
    S("v_add_u32 %s, 0x2000, %s" % (vW2s[1], vW2s[0]))
    S("s_lshr_b32 %s, %s, 2" % (sTc, sRB))
    S("s_mul_i32 %s, %s, %d" % (sTc, sTc, A_GRP))
    S("s_and_b32 %s, %s, 3" % (sBH, sRB))
    S("s_lshl_b32 %s, %s, 2" % (sBH, sBH))
    S("s_add_u32 %s, %s, %s" % (sBH, sBH, sW))
    S("s_lshl_b32 %s, %s, 10" % (sBH, sBH))
    S("s_add_u32 %s, %s, %s" % (sTc, sTc, sBH))
    S("s_add_u32 %s, %s, 0x%x" % (sTc, sTc, A_OFF))
    S("v_add_u32 %s, %s, %s" % (vSt[0], sTc, vL16))
    S("v_xor_b32 %s, 0x400, %s" % (vSt[1], vSt[0]))
    S("s_lshr_b32 %s, %s, 3" % (sTc, sR2))
    S("s_mul_i32 %s, %s, %d" % (sTc, sTc, A_GRP))
    S("s_and_b32 %s, %s, 7" % (sBH, sR2))
    S("s_lshl_b32 %s, %s, 11" % (sBH, sBH))
    S("s_add_u32 %s, %s, %s" % (sTc, sTc, sBH))
    S("s_add_u32 %s, %s, 0x%x" % (sTc, sTc, A_OFF))
    S("v_add_u32 %s, %s, %s" % (vA, sTc, vL16))
    S("s_mul_i32 %s, %s, %d" % (sBH, sW, 28 * UNIT))
    S("s_lshl_b32 %s, %s, 17" % (sBO, sW))
    S(lambda: G.ev.add("setup"))
    S("s_add_u32 %s, %s, 0x%x" % (sPollH, sPollH, WS_G))
    S("v_cmp_eq_u32 vcc, 63, %s" % vL)
    S("v_mov_b32 %s, %s" % (t0, sPollH))
    S("v_mov_b32 %s, 0x7fffff00" % t4)
    S("v_cndmask_b32 %s, %s, %s, vcc" % (vGoff, t4, t0))
    S("s_lshl_b32 %s, %s, 1" % (sTc, sRB))
    S("s_add_u32 %s, %s, %s" % (sCntGq, sTc, sRW))
    S("s_lshl_b32 %s, %s, 2" % (sCntSig, sCntGq))
    S("s_lshr_b32 %s, %s, 2" % (sPoll, sCG))
    S("s_add_u32 %s, %s, %s" % (sCntSig, sCntSig, sPoll))
    S("s_lshr_b32 %s, %s, 3" % (sPoll, sCG))
    S("s_add_u32 %s, %s, %s" % (sCntGsig, sTc, sPoll))
    S("s_lshl_b32 %s, %s, 1" % (sCntKV, sP))
    S("s_add_u32 %s, %s, %s" % (sCntKV, sCntKV, sCW))
    S("s_lshl_b32 %s, %s, 2" % (sCntH, sR2))
    S("s_add_u32 %s, %s, %s" % (sCntH, sCntH, sW))
    S("s_mov_b32 %s, %s" % (sCntG, sR2))
    for s, b in ((sCntSig, 0), (sCntKV, 128), (sCntGsig, 144), (sCntH, 0), (sCntG, 144), (sCntGq, 144)):
        S("s_lshl_b32 %s, %s, 8" % (s, s))
        S("s_add_u32 %s, %s, 0x%x" % (s, s, WS_CNT + b * 256))
    S(lambda: G.waitvm("g"))
    GU = TMP + 12
    XU = TMP + 20
    for i in range(4):
        S("v_lshlrev_b32 v%d, 16, v%d" % (GU + 2 * i, GW + i))
        S("v_and_b32 v%d, %s, v%d" % (GU + 2 * i + 1, vMaskHi, GW + i))
    for r, GX in enumerate((GX0, GX1)):
        for i in range(4):
            S("v_lshlrev_b32 v%d, 16, v%d" % (XU + 2 * i, GX + i))
            S("v_and_b32 v%d, %s, v%d" % (XU + 2 * i + 1, vMaskHi, GX + i))
        for i in range(8):
            S("v_mul_f32 v%d, v%d, v%d" % (XU + i, XU + i, GU + i))
        for i in range(4):
            S("v_cvt_pk_bf16_f32 v%d, v%d, v%d" % (GX + i, XU + 2 * i, XU + 2 * i + 1))
        for i in range(4):
            S("v_lshlrev_b32 v%d, 16, v%d" % (XU + 2 * i, GX + i))
            S("v_and_b32 v%d, %s, v%d" % (XU + 2 * i + 1, vMaskHi, GX + i))
        for i in range(4):
            S("v_add_f32 v%d, v%d, v%d" % (XU + i, XU + i, XU + 4 + i))
        S("v_add_f32 v%d, v%d, v%d" % (XU, XU, XU + 2))
        S("v_add_f32 v%d, v%d, v%d" % (XU + 1, XU + 1, XU + 3))
        S("v_add_f32 v%d, v%d, v%d" % (vGv + r, XU, XU + 1))
    for mod in ("row_shr:1 row_mask:0xf", "row_shr:2 row_mask:0xf", "row_shr:4 row_mask:0xf", "row_shr:8 row_mask:0xf",
                "row_bcast:15 row_mask:0xa", "row_bcast:31 row_mask:0xc"):
        S(("@skip", 1))
        for r in range(2):
            S("v_add_f32_dpp v%d, v%d, v%d %s bank_mask:0xf" % (vGv + r, vGv + r, vGv + r, mod))
    S("v_cvt_pk_bf16_f32 v%d, v%d, v%d" % (XU, vGv, vGv + 1))
    S("v_lshlrev_b32 v%d, 16, v%d" % (vGv, XU))
    S("v_and_b32 v%d, %s, v%d" % (vGv + 1, vMaskHi, XU))
    for r in range(2):
        S("v_mul_f32 v%d, 0xbfb8aa3b, v%d" % (vGv + r, vGv + r))
    for r in range(2):
        S("v_exp_f32 v%d, v%d" % (vGv + r, vGv + r))
    for r in range(2):
        S("v_add_f32 v%d, 1.0, v%d" % (vGv + r, vGv + r))
    for r in range(2):
        S("v_rcp_f32 v%d, v%d" % (vGv + r, vGv + r))
    S(("@skip", 1))
    S("v_cvt_pk_bf16_f32 v%d, v%d, v%d" % (XU, vGv, vGv + 1))
    S("v_lshlrev_b32 v%d, 16, v%d" % (vGv, XU))
    S("v_and_b32 v%d, %s, v%d" % (vGv + 1, vMaskHi, XU))

    if isQ:
        p2unit = [0, 0, 4, 4, 1, 1, 5, 5]
        for c in range(8):
            ev = "B%d" % (8 - CFG["dist"] + c // 4)
            for i in range(2):
                pre = chunk_pre(c, pitchB, False) if i == 0 else []
                G.push(pre + ["s_lshr_b32 m0, %s, 1" % sM0w, "s_add_u32 m0, m0, %d" % (p2unit[c] * UNIT + (c & 1) * 8192 + i * 1024)],
                       "buffer_load_dwordx4 %s, %s, %s offen lds" % (vWp2[i], srdB, sWs), ("c2", c), ev)
        ulist = [(8, None), (2, "B7"), (6, "B7"), (3, "B8"), (7, "B8"), (0, "C2"), (4, "C3"), (1, "C4"), (5, "C5")]
    else:
        p2unit = [0, 4, 1, 5, 2, 6, 3, 7]
        for c in range(8):
            ev = "B%d" % min(8, 8 - CFG["dist"] + c // 2)
            for i in range(4):
                pre = chunk_pre(c, pitchB, False) if i == 0 else []
                G.push(pre + ["s_add_u32 m0, %s, %d" % (sM0w, p2unit[c] * UNIT + i * 1024)],
                       "buffer_load_dwordx4 %s, %s, %s offen lds" % (vWp2[i], srdB, sWs), ("c2", c), ev)
        ulist = [(8, None)] + [(p2unit[c], "C%d" % (c + 2)) for c in range(8)]

    steps = [("h", u) for u in list(range(8)) + list(range(20, 28)) + list(range(8, 20))] + [("o", i) for i in range(8)]

    def push_w2(s, ev):
        k = (s % 18) // 2
        kind, u = steps[s]
        for j4 in range(2):
            pre = ["s_add_u32 %s, %s, %d" % (sWs, sBH if kind == "h" else sBO, u * UNIT)] if j4 == 0 else []
            G.push(pre + ["s_add_u32 m0, %s, %d" % (sM0w, ulist[k][0] * UNIT + (s & 1) * 2048 + j4 * 1024)],
                   "buffer_load_dwordx4 %s, %s, %s offen lds" % (vW2s[j4], SRD_W2 if kind == "h" else SRD_WO, sWs), ("w2", s), ev)
    for s in range(18):
        push_w2(s, ulist[s // 2][1])

    def reads1(g):
        c, t = g >> 2, g & 3
        fb = FR + (g % 3) * 8
        out = []
        for R in range(2):
            out.append(("ds_read_b128 %s, %s offset:%d" % (ar((g * 2 + R) * 4, 4), vXr[R][t], (c % 4) * UNIT), ("r1", g)))
        for tl in range(2):
            for j4 in range(2):
                out.append(("ds_read_b64_tr_b16 %s, %s offset:%d" % (vr(fb + tl * 4 + j4 * 2, 2), vWr, (c % 4) * UNIT + t * 4096 + j4 * 1024 + tl * 512), ("r1", g)))
        return out

    LAG2 = 4 if isQ else 2
    NB2 = 6 if isQ else 3
    FS2 = 4 if isQ else 8

    def reads2(g):
        c, t = g >> 2, g & 3
        fb = FR2 + ((g + LAG2) % NB2) * FS2
        u = p2unit[c]
        hi = 1 if u >= 4 else 0
        out = []
        if isQ:
            for j4 in range(2):
                out.append(("ds_read_b64_tr_b16 %s, %s offset:%d" % (vr(fb + j4 * 2, 2), vP2r[hi], (u % 4) * UNIT + (c & 1) * 8192 + t * 2048 + j4 * 256), ("r2", g)))
        else:
            for tl in range(2):
                for j4 in range(2):
                    out.append(("ds_read_b64_tr_b16 %s, %s offset:%d" % (vr(fb + tl * 4 + j4 * 2, 2), vP2r[tl * 2 + hi], (u % 4) * UNIT + t * 4096 + j4 * 1024), ("r2", g)))
        return out

    per = 8 if isQ else 4
    FR2 = FR
    G.fill(CFG.get("burst", 4))
    G.stamp(1)
    G.need(("c1", 0))
    G.barrier("B0")
    G.stamp(2)
    for g in range(2):
        for x in reads1(g):
            G(*x)
    for g in range(32):
        if (g + 2) % 4 == 0:
            c = (g + 2) // 4
            G.fstamp(1, 2 * c - 2)
            if c < 8:
                G.need(("c1", c))
            else:
                G.need(*[("c2", cc) for cc in range(per // 4)])
            G.waitlg(("r1", g + 1))
            G.barrier("B%d" % c)
            if c == 5:
                assert "setup" in G.ev
            G.fstamp(1, 2 * c - 1)
        if g + 2 < 32:
            rd = reads1(g + 2)
        else:
            rd = []
            for gg in range((g - 30) * LAG2 // 2, (g - 29) * LAG2 // 2):
                rd += reads2(gg)
        G.waitlg(("r1", g))
        fb = FR + (g % 3) * 8
        n = 0
        for tl in range(2):
            for R in range(2):
                d = vr(ACC + (tl * 2 + R) * 16, 16)
                x = ar((g * 2 + R) * 4, 4)
                wv = vr(fb + tl * 4, 4)
                cin = d if g > 0 else (vr(BIAS + tl * 16, 16) if isQ else "0")
                if isQ:
                    G("v_mfma_f32_32x32x16_bf16 %s, %s, %s, %s" % (d, wv, x, cin))
                else:
                    G("v_mfma_f32_32x32x16_bf16 %s, %s, %s, %s" % (d, x, wv, cin))
                for y in rd[2 * n:2 * n + 2]:
                    G(*y)
                G.gap(CFG["side1"], CFG["rate1"] / 100.0)
                n += 1
    G.flush_side()
    G.ev.add("C0")
    G.stamp(3)
    G.init_issue()

    def relu2_store(base, voff, soff, tag):
        out = []
        for i in range(16):
            out.append("v_max_f32 v%d, 0, v%d" % (base + i, base + i))
        for i in range(8):
            out.append("v_pk_mul_f32 %s, %s, %s" % (vr(base + 2 * i, 2), vr(base + 2 * i, 2), vr(base + 2 * i, 2)))
        for i in range(8):
            out.append("v_cvt_pk_bf16_f32 v%d, v%d, v%d" % (base + i, base + 2 * i, base + 2 * i + 1))
        st = [("buffer_store_dwordx4 %s, %s, %s, %s offen sc1" % (vr(base, 4), voff, SRD_WS, soff), tag),
              "s_add_u32 %s, %s, %d" % (sTb, soff, UNIT),
              ("buffer_store_dwordx4 %s, %s, %s, %s offen sc1" % (vr(base + 4, 4), voff, SRD_WS, sTb), tag)]
        return out, st

    cL2E, cEPS = "v252", "v251"

    def phi_pack(base, tmp):
        out = []
        if CFG["pk"]:
            for i in range(8):
                out.append("v_pk_mul_f32 %s, %s, v[252:253] op_sel_hi:[1,0]" % (vr(tmp + 2 * i, 2), vr(base + 2 * i, 2)))
        else:
            for i in range(16):
                out.append("v_mul_f32 v%d, %s, v%d" % (tmp + i, cL2E, base + i))
        for i in range(16):
            out.append("v_exp_f32_e64 v%d, v%d clamp" % (tmp + i, tmp + i))
            out.append("v_max_f32 v%d, %s, v%d" % (base + i, cEPS, base + i))
        if CFG["pk"]:
            for i in range(8):
                out.append("v_pk_add_f32 %s, %s, %s" % (vr(base + 2 * i, 2), vr(base + 2 * i, 2), vr(tmp + 2 * i, 2)))
        else:
            for i in range(16):
                out.append("v_add_f32 v%d, v%d, v%d" % (base + i, base + i, tmp + i))
        for i in range(8):
            out.append("v_cvt_pk_bf16_f32 v%d, v%d, v%d" % (base + i, base + 2 * i, base + 2 * i + 1))
        return out

    gstore = ("buffer_store_dwordx2 %s, %s, %s, 0 offen sc1" % (vr(vGv, 2), vGoff, SRD_WS), "pub1")

    def pub1_signal():
        G.signal(sCntSig if isQ else sCntKV, 1)
        G.signal(sCntGsig, 1)
        G.fstamp(2, 1)

    S("v_mov_b32 %s, 0x3fb8aa3b" % cL2E)
    S("v_mov_b32 %s, 0x358637bd" % cEPS)
    if isQ:
        sts = [gstore]
        for tl in range(2):
            for R in range(2):
                o, st = relu2_store(ACC + (tl * 2 + R) * 16, vSt[R], sUA if tl == 0 else sUB, "pub1")
                G.side += o
                sts += st
        G.side += sts
        S(lambda: G.fstamp(2, 0))
        S(lambda: G.signal_when("pub1", pub1_signal, CFG["sigQ"]))
    else:
        ONES = TMP + 32
        KD, ZD = TMP, TMP + 16
        for R in range(2):
            G.side += phi_pack(ACC + R * 16, TMP)
        for R in range(2):
            b = ACC + 32 + R * 16
            for i in range(8):
                S("v_cvt_pk_bf16_f32 v%d, v%d, v%d" % (b + i, b + 2 * i, b + 2 * i + 1))
        for i in range(4):
            S("v_mov_b32 v%d, 0x3f803f80" % (ONES + i))
        a0, a1, a2, a3 = "v244", "v245", "v246", "v247"
        S("v_and_b32 %s, 16, %s" % (a0, vL))
        S("v_cmp_eq_u32 vcc, 0, %s" % a0)
        n = 0
        for R in range(2):
            for kk in range(2):
                pk = vr(ACC + R * 16 + kk * 4, 4)
                vv = vr(ACC + 32 + R * 16 + kk * 4, 4)
                S("v_mfma_f32_32x32x16_bf16 %s, %s, %s, %s" % (vr(KD, 16), pk, vv, vr(KD, 16) if n else "0"))
                n += 1
        n = 0
        for R in range(2):
            for kk in range(2):
                pk = vr(ACC + R * 16 + kk * 4, 4)
                S("v_mfma_f32_32x32x16_bf16 %s, %s, %s, %s" % (vr(ZD, 16), vr(ONES, 4), pk, vr(ZD, 16) if n else "0"))
                n += 1
        S("s_lshl_b32 %s, %s, 10" % (sTc, sW))
        S("s_add_u32 %s, %s, %d" % (sTc, sTc, MISC))
        S("v_add_u32 %s, %s, %s" % (a0, sTc, vL16))
        S("v_xor_b32 %s, 0x800, %s" % (a1, a0))
        S("s_lshl_b32 %s, %s, 8" % (sTc, sW))
        S("s_add_u32 %s, %s, %d" % (sTc, sTc, MISC + 4096))
        S("v_lshl_add_u32 %s, %s, 2, %s" % (a2, vL, sTc))
        S("v_xor_b32 %s, 0x200, %s" % (a3, a2))
        for i in range(8):
            S("v_cndmask_b32 v%d, v%d, v%d, vcc" % (KD + i, KD + 8 + i, KD + i))

        def swp():
            G("s_cmp_eq_u32 %s, 0" % sRW)
            G("s_cbranch_scc1 LK_noswap")
            for i in range(4):
                G("v_swap_b32 v%d, v%d" % (KD + i, KD + 4 + i), "cond")
            G("LK_noswap:")
        S(swp)
        S(("ds_write_b128 %s, %s" % (a0, vr(KD + 4, 4)), "kx"))
        S(("ds_write_b32 %s, v%d" % (a2, ZD), "kx"))
        S("s_lshl_b32 %s, %s, 1" % (sTc, sP))
        S("s_add_u32 %s, %s, %s" % (sTc, sTc, sCW))
        S("s_lshl_b32 %s, %s, 4" % (sTc, sTc))
        S("s_add_u32 %s, %s, %s" % (sTc, sTc, sRB))
        S("s_lshl_b32 %s, %s, 1" % (sTb, sTc))
        S("s_add_u32 %s, %s, %s" % (sTb, sTb, sRW))
        S("s_lshl_b32 %s, %s, 10" % (sTb, sTb))
        S("s_add_u32 %s, %s, 0x%x" % (sTb, sTb, WS_KVP))
        S("s_lshl_b32 %s, %s, 7" % (sTc, sTc))
        S("s_add_u32 %s, %s, 0x%x" % (sTc, sTc, WS_Z))

        def xbar():
            G.waitlg("kx")
            G("s_barrier")
        S(xbar)
        S(("ds_read_b128 %s, %s" % (vr(KD + 4, 4), a1), "kr"))
        S(("ds_read_b32 v%d, %s" % (ZD + 1, a3), "kr"))
        S(("@skip", 3))
        S(lambda: G.waitlg("kr"))
        for i in range(4):
            S("v_add_f32 v%d, v%d, v%d" % (KD + i, KD + i, KD + 4 + i))
        S("v_add_f32 v%d, v%d, v%d" % (ZD, ZD, ZD + 1))
        S(("buffer_store_dwordx4 %s, %s, %s, %s offen sc1" % (vr(KD, 4), vL16, SRD_WS, sTb), "pub1"))
        S(("buffer_store_dword v%d, %s, %s, %s offen sc1" % (ZD, vS4, SRD_WS, sTc), "pub1"))
        S(gstore)
        S(lambda: G.fstamp(2, 0))
        S(lambda: G.signal_when("pub1", pub1_signal, CFG["sigK"]))
    if not CFG["ovl"]:
        G.flush_side()
    G.stamp(4)

    for g in range(32):
        if g == 3:
            G.init_gate()
        if g == 29:
            G.poll_issue(sPollH, sCntH)
            if isQ:
                G.poll_issue(sPollG, sCntGq)
                G.poll_issue(sPoll, sCntKV)
        if (g + LAG2) % per == 0:
            i = (g + LAG2) // per
            if i * per < 32:
                G.need(*[("c2", c) for c in range(i * per // 4, (i + 1) * per // 4)])
            G.barrier("C%d" % i)
        rd = reads2(g + LAG2) if g + LAG2 < 32 else []
        G.waitlg(("r2", g))
        fb = FR2 + ((g + LAG2) % NB2) * FS2
        jobs = [(0, 0), (0, 1)] if isQ else [(0, 0), (0, 1), (1, 0)]
        for n, (tl, R) in enumerate(jobs):
            d = vr(ACC2 + n * 16, 16)
            cin = d if g > 0 else ("0" if isQ else vr(BIAS + tl * 16, 16))
            G("v_mfma_f32_32x32x16_bf16 %s, %s, %s, %s" % (d, vr(fb + tl * 4, 4), ar((g * 2 + R) * 4, 4), cin))
            k0 = n * len(rd) // len(jobs) if isQ else 2 * n
            k1 = (n + 1) * len(rd) // len(jobs) if isQ else 2 * n + 2
            for y in rd[k0:k1]:
                G(*y)
            G.gap(CFG["side2Q" if isQ else "side2K"], CFG["rate2"] / 100.0)
    G.barrier("C%d" % (32 // per + 1))
    G.fstamp(2, 2)
    G.stamp(6)

    def w2reads(s, dst):
        k = (s % 18) // 2
        u = ulist[k][0]
        out = []
        for T in range(2):
            for j4 in range(2):
                out.append(("ds_read_b64_tr_b16 %s, %s offset:%d" % (dst(T * 4 + j4 * 2), vW2r[u // 4], (u % 4) * UNIT + (s & 1) * 2048 + j4 * 1024 + T * 512), ("wr", s)))
        return out

    ndrained = [0]

    def drain():
        k = ndrained[0]
        if k > 9:
            return
        ndrained[0] += 1
        if k < 9:
            G.need(("w2", 2 * k), ("w2", 2 * k + 1))
            for s in (2 * k, 2 * k + 1):
                for x in w2reads(s, lambda o, s=s: ar(s * 8 + o, 2)):
                    G(*x)
        if k > 0:
            G.waitlg(("wr", 2 * k - 1))
            G.ev.add("D%d" % (k - 1))

    def pub2_signal():
        G.signal(sCntSig, 2)
        G.fstamp(2, 9)

    NRING = 28
    RING = 144
    AL = [(s, R) for s in range(26) for R in range(2)] + [(26, 0), (27, 0), (26, 1), (27, 1)] + \
         [(s, 0) for s in range(28, 36)] + [(s, 1) for s in range(28, 36)]
    GO = TMP + 40
    GR = TMP + 16
    B2 = TMP + 20
    vRW = [TMP + i for i in range(8)]
    vRD = [TMP + 8 + i for i in range(2)]
    vO = TMP + 12
    vGr = TMP + 13
    vB2 = TMP + 14

    def hook_a(i):
        def f():
            if i == 0:
                G.fstamp(2, 7)
                G.gate(sPollH, sCntH, 0, 4)
                G.fstamp(2, 8)
            if i == 24:
                G.poll_issue(sPollH, sCntH)
                G.poll_issue(sPollG, sCntG)
            if i == 48:
                G.poll_issue(sPollH, sCntH)
            if i == 32:
                G.fstamp(2, 10)
                G.gate(sPollG, sCntG, 0, 32)
                G.gate(sPollH, sCntH, 8, 4, pending=False)
                G.fstamp(2, 11)
                assert "raddr" in G.ev
                G("s_lshl_b32 %s, %s, 8" % (sXs, sR2))
                G("s_add_u32 %s, %s, 0x%x" % (sXs, sXs, WS_G))
                G("buffer_load_dword v%d, %s, %s, %s offen sc1" % (GO, vS4, SRD_WS, sXs), "go")
                G("buffer_load_dword v%d, %s, %s, %s offen offset:128 sc1" % (GO + 2, vS4, SRD_WS, sXs), "go")
                G("buffer_load_dword v%d, v%d, %s, %s offen sc1" % (GR, vGr, SRD_WS, sXs), "go")
                G("buffer_load_dword v%d, v%d, %s, %s offen offset:128 sc1" % (GR + 1, vGr, SRD_WS, sXs), "go")
                G("global_load_dwordx4 %s, v%d, s[38:39]" % (vr(B2, 4), vB2), "go")
            if i == 56:
                G.fstamp(2, 12)
                G.gate(sPollH, sCntH, 16, 4)
                G.fstamp(2, 13)
        return f

    def push_a(i):
        s, R = AL[i]
        kind, u = steps[s]
        G.push(["s_add_u32 %s, %s, %d" % (sTa, sBH if kind == "h" else sBO, (u if kind == "h" else 112 + u) * UNIT)] if (i == 0 or AL[i - 1][0] != s) else [],
               "buffer_load_dwordx4 %s, %s, %s, %s offen offset:%d sc1" % (ar(RING + (i % NRING) * 4, 4), vA, SRD_WS, sTa, R * 1024),
               ("a", i), None if i < NRING else "M%d" % (i - NRING), hook_a(i))

    r2e = CFG["r2_earlyQ" if isQ else "r2_early"]
    s2 = 18
    for _ in range(2 * r2e):
        push_w2(s2, "D%d" % ((s2 - 18) // 2))
        s2 += 1
    for i in range(0, len(AL), 2):
        push_a(i)
        push_a(i + 1)
        if s2 < 36:
            push_w2(s2, "D%d" % ((s2 - 18) // 2))
            s2 += 1

    EV = CFG["ev"]

    def mix(L, ndr):
        marks = {(j + 1) * len(L) // (ndr + 1) for j in range(ndr)} if ndr else set()
        for i, x in enumerate(L):
            if i in marks:
                drain()
                G.fill(1)
            G.emit_item(x)
            if i % EV == EV - 1:
                G.fill(1)

    G.flush_side()
    if not isQ:
        L, sts = [], []
        for n, (R, so) in enumerate(((0, sUA), (1, sUA), (0, sUB))):
            o, st = relu2_store(ACC2 + n * 16, vSt[R], so, "pub2")
            L += o
            sts += st
        drain()
        mix(L, 4)
        if G.psig:
            G.waitvm("pub1")
        for x in sts:
            G.emit_item(x)
        G.signal_when("pub2", pub2_signal, CFG["sig2"])
        G.fstamp(2, 3)
    else:
        L = []
        for R in range(2):
            L += phi_pack(ACC2 + R * 16, TMP)
        GQ = TMP + 40
        PK = ACC
        ZL = TMP
        L.append("v_lshlrev_b32 %s, 2, %s" % (t4, vL))
        L.append("s_lshl_b32 %s, %s, 11" % (sTc, sW))
        L.append("s_add_u32 %s, %s, %d" % (sTc, sTc, MISC))
        L.append("v_add_u32 %s, %s, %s" % (t0, sTc, vL16))
        L.append("v_xor_b32 %s, 0x1000, %s" % (t1, t0))
        L.append("s_lshl_b32 %s, %s, 8" % (sTc, sW))
        L.append("s_add_u32 %s, %s, %d" % (sTc, sTc, MISC + 8192))
        L.append("v_add_u32 %s, %s, %s" % (t2, sTc, t4))
        L.append("v_and_b32 %s, 16, %s" % (t3, vL))
        L.append("v_cmp_eq_u32 vcc, 0, %s" % t3)
        L.append("v_xor_b32 %s, 16, %s" % (t3, t3))
        L.append("v_lshrrev_b32 v245, 5, %s" % vL)
        L.append("v_lshl_add_u32 %s, v245, 2, %s" % (t3, t3))
        L.append("s_lshl_b32 %s, %s, 8" % (sTc, sCW))
        L.append("s_add_u32 %s, %s, %d" % (sTc, sTc, MISC + 8192))
        L.append("v_lshl_add_u32 %s, %s, 2, %s" % (t3, t3, sTc))
        L.append("s_lshl_b32 %s, %s, 1" % (sTb, sP))
        L.append("s_add_u32 %s, %s, %s" % (sTb, sTb, sCW))
        L.append("s_lshl_b32 %s, %s, 15" % (sTc, sTb))
        L.append("s_add_u32 %s, %s, %d" % (sUA, sTc, 112 * UNIT))
        L.append("s_add_u32 %s, %s, %d" % (sUB, sTc, 113 * UNIT))
        L.append("s_lshl_b32 %s, %s, 1" % (sTc, sTb))
        L.append("s_add_u32 %s, %s, %s" % (sTc, sTc, sRW))
        L.append("s_lshl_b32 %s, %s, 14" % (sTb, sTc))
        L.append("s_add_u32 %s, %s, 0x%x" % (sTb, sTb, WS_KVP))
        L.append("s_lshl_b32 %s, %s, 10" % (sTc, sTc))
        L.append("s_add_u32 %s, %s, 0x%x" % (sTc, sTc, WS_Z))
        L.append("s_lshl_b32 s33, %s, 2" % sRB)
        L.append("s_add_u32 s33, s33, %s" % sW)
        L.append("s_lshl_b32 s33, s33, 7")
        L.append("s_add_u32 s33, s33, 0x%x" % WS_G)
        L.append("s_xor_b32 s34, s33, 0x80")
        drain()
        mix(L, 5)
        if G.psig:
            G.waitvm("pub1")
        G.fill(CFG["qpre"])
        G.fstamp(2, 3)
        G.gate(sPollG, sCntGq, 0, 32)
        G.gate(sPoll, sCntKV, 0, 32, pending=False)
        G.fstamp(2, 4)
        for i in range(16):
            if i and i % 4 == 0:
                G("s_add_u32 %s, %s, 4096" % (sTb, sTb))
            G("buffer_load_dwordx4 %s, %s, %s, %s offen offset:%d sc1" % (vr(PK + i * 4, 4), vL16, SRD_WS, sTb, (i % 4) * 1024), ("kvp", i // 8))
        for i in range(4):
            G("buffer_load_dword v%d, %s, %s, %s offen offset:%d sc1" % (ZL + i, t4, SRD_WS, sTc, i * 256), "kvz")
        G("buffer_load_dword v%d, %s, %s, s33 offen sc1" % (GQ, vS4, SRD_WS), "kvz")
        G("buffer_load_dword v%d, %s, %s, s34 offen sc1" % (GQ + 1, vS4, SRD_WS), "kvz")
        drain()
        drain()
        G.fill(4)
        G.waitvm(("kvp", 0))
        for st in (16, 8):
            for i in range(0, st, 2):
                G("v_pk_add_f32 %s, %s, %s" % (vr(PK + i, 2), vr(PK + i, 2), vr(PK + st + i, 2)))
        G.fill(2)
        G.waitvm(("kvp", 1))
        for st in (16, 8):
            for i in range(0, st, 2):
                G("v_pk_add_f32 %s, %s, %s" % (vr(PK + 32 + i, 2), vr(PK + 32 + i, 2), vr(PK + 32 + st + i, 2)))
        G.waitvm("kvz")
        G.fstamp(2, 5)
        G("v_add_f32 v%d, v%d, v%d" % (ZL, ZL, ZL + 1))
        G("v_add_f32 v%d, v%d, v%d" % (ZL + 2, ZL + 2, ZL + 3))
        G("v_add_f32 v%d, v%d, v%d" % (ZL, ZL, ZL + 2))
        G("v_mov_b32 v%d, v%d" % (ZL + 1, ZL))
        for i in range(0, 8, 2):
            G("v_pk_add_f32 %s, %s, %s" % (vr(PK + i, 2), vr(PK + i, 2), vr(PK + 32 + i, 2)))
        G("v_permlane32_swap_b32 v%d, v%d" % (ZL, ZL + 1))
        G("ds_write_b128 %s, %s" % (t0, vr(PK, 4)), "qx")
        G("v_add_f32 v%d, v%d, v%d" % (ZL, ZL, ZL + 1))
        G("ds_write_b128 %s, %s offset:1024" % (t0, vr(PK + 4, 4)), "qx")
        G("ds_write_b32 %s, v%d" % (t2, ZL), "qx")
        G.fill(2)
        G.waitlg("qx")
        G.barrier("BQ")
        G("ds_read_b128 %s, %s" % (vr(PK + 8, 4), t1), "qr")
        G("ds_read_b128 %s, %s offset:1024" % (vr(PK + 12, 4), t1), "qr")
        G("ds_read_b128 %s, %s" % (vr(PK + 16, 4), t3), "qr")
        G("ds_read_b128 %s, %s offset:32" % (vr(PK + 20, 4), t3), "qr")
        G("ds_read_b128 %s, %s offset:512" % (vr(PK + 24, 4), t3), "qr")
        G("ds_read_b128 %s, %s offset:544" % (vr(PK + 28, 4), t3), "qr")
        G.fill(2)
        G.waitlg("qr")
        for i in range(0, 8, 2):
            G("v_pk_add_f32 %s, %s, %s" % (vr(PK + i, 2), vr(PK + i, 2), vr(PK + 8 + i, 2)))
            G("v_pk_add_f32 %s, %s, %s" % (vr(PK + 16 + i, 2), vr(PK + 16 + i, 2), vr(PK + 24 + i, 2)))
        for i in range(4):
            G("v_cvt_pk_bf16_f32 v%d, v%d, v%d" % (PK + i, PK + 2 * i, PK + 2 * i + 1))
            G("v_cvt_pk_bf16_f32 v%d, v%d, v%d" % (PK + 16 + i, PK + 16 + 2 * i, PK + 16 + 2 * i + 1))
        A0, A1 = FR, FR + 4
        for i in range(4):
            G("v_cndmask_b32 v%d, v%d, v%d, vcc" % (A0 + i, PK + 16 + i, PK + i))
        for i in range(4):
            G("v_cndmask_b32 v%d, v%d, v%d, vcc" % (A1 + i, PK + i, PK + 16 + i))
        OD = BIAS
        for hd in range(2):
            for R in range(2):
                G("v_mfma_f32_32x32x16_bf16 %s, %s, %s, 0" % (vr(OD + (hd * 2 + R) * 16, 16), vr(A1 if hd else A0, 4), vr(ACC2 + R * 16 + hd * 4, 4)))
                G.fill(1)
        sts = []
        for hd in range(2):
            for R in range(2):
                b = OD + (hd * 2 + R) * 16
                num, den = (b + 8, b) if hd else (b, b + 8)
                G("v_add_f32 v%d, %s, v%d" % (den, cEPS, den))
                G("v_rcp_f32 v%d, v%d" % (den, den))
                G("v_mul_f32 v%d, v%d, v%d" % (den, den, GQ + R))
                for i in range(4):
                    G("v_pk_mul_f32 %s, %s, %s op_sel_hi:[1,0]" % (vr(num + 2 * i, 2), vr(num + 2 * i, 2), vr(den, 2)))
                for i in range(4):
                    G("v_cvt_pk_bf16_f32 v%d, v%d, v%d" % (ACC2 + 32 + (hd * 2 + R) * 4 + i, num + 2 * i, num + 2 * i + 1))
                G("buffer_store_dwordx4 %s, %s, %s, %s offen sc1" % (vr(ACC2 + 32 + (hd * 2 + R) * 4, 4), vSt[R], SRD_WS, sUB if hd else sUA), "pub2")
        G.signal_when("pub2", pub2_signal, CFG["sig2"])
        G.fstamp(2, 6)
    while ndrained[0] <= 9:
        drain()
        G.fill(2)

    AH = 2 * CFG["ahead"]
    assert AH + 2 <= NRING
    S = G.side.append
    S("v_and_b32 %s, 15, %s" % (t0, vL))
    S("v_lshrrev_b32 %s, 5, %s" % (t1, vL))
    S("v_xor_b32 %s, %s, %s" % (t1, t1, t0))
    S("v_lshlrev_b32 %s, 4, %s" % (t1, t1))
    S("v_lshl_add_u32 %s, %s, 8, %s" % (t1, t0, t1))
    S("v_bfe_u32 %s, %s, 4, 1" % (t0, vL))
    S("v_lshl_add_u32 %s, %s, 14, %s" % (t1, t0, t1))
    S("v_add_u32 v%d, %s, %s" % (vRW[0], sM0w, t1))
    S("v_lshrrev_b32 %s, 3, %s" % (t0, vL))
    S("v_and_b32 %s, 7, %s" % (t1, vL))
    S("s_lshl_b32 %s, %s, 5" % (sTc, sW))
    S("v_lshl_add_u32 v%d, %s, 2, %s" % (vGr, t0, sTc))
    S("s_lshl_b32 %s, %s, 7" % (sUB, sCT))
    S("v_lshl_add_u32 v%d, %s, 4, %s" % (vB2, t1, sUB))
    S(lambda: G.ev.add("raddr"))
    for i in range(1, 8):
        S("v_xor_b32 v%d, %d, v%d" % (vRW[i], i << 5, vRW[0]))
    S("s_lshl_b32 %s, %s, 3" % (sTc, sCW))
    S("v_add_u32 %s, %s, %s" % (t3, sTc, t0))
    S("v_lshlrev_b32 %s, 1, %s" % (t2, t1))
    S("v_xor_b32 %s, %s, %s" % (t2, t2, t3))
    S("v_lshlrev_b32 %s, 4, %s" % (t2, t2))
    S("v_lshl_add_u32 %s, %s, 8, %s" % (t2, t3, t2))
    S("s_lshl_b32 %s, %s, 14" % (sTc, sRW))
    S("v_add_u32 v%d, %s, %s" % (vRD[0], sTc, t2))
    S("v_xor_b32 v%d, 16, v%d" % (vRD[1], vRD[0]))
    S("v_lshlrev_b32 %s, 4, %s" % (t1, t1))
    S("v_lshl_add_u32 v%d, %s, 10, %s" % (vO, t0, t1))
    S("s_lshl_b32 %s, %s, 3" % (sUA, sR2))
    S("s_add_u32 %s, %s, %s" % (sUA, sUA, sW))
    S("s_lshl_b32 %s, %s, 13" % (sUA, sUA))
    S("s_add_u32 %s, %s, %s" % (sUA, sUA, sUB))
    S("s_add_u32 %s, %s, 0x8000" % (sUB, sUA))

    BG = BIAS

    def gprep():
        out = [lambda: G.waitvm("go")]
        for a, b, c in ((GO, GO + 2, GO + 1), (GR, GR + 1, GR + 2)):
            out.append("v_sub_f32 v%d, 1.0, v%d" % (a, a))
            out.append("v_sub_f32 v%d, 1.0, v%d" % (b, b))
            out.append("v_cvt_pk_bf16_f32 v%d, v%d, v%d" % (c, a, b))
            out.append("v_lshlrev_b32 v%d, 16, v%d" % (a, c))
            out.append("v_and_b32 v%d, %s, v%d" % (b, vMaskHi, c))
        for i in range(4):
            out.append("v_lshlrev_b32 v%d, 16, v%d" % (BG + 16 + 2 * i, B2 + i))
            out.append("v_and_b32 v%d, %s, v%d" % (BG + 16 + 2 * i + 1, vMaskHi, B2 + i))
        for R in range(2):
            for i in range(8):
                out.append("v_mul_f32 v%d, v%d, v%d" % (BG + R * 8 + i, GR + R, BG + 16 + i))
        return out

    def wfrag(s, T):
        if s < 18:
            return ar(s * 8 + T * 4, 4)
        if s >= 28:
            return ar((s - 28) * 8 + T * 4, 4)
        return vr(FR + (s % 3) * 8 + T * 4, 4)

    def jit(s):
        G.need(("w2", s))
        if s >= 28:
            return w2reads(s, lambda o: ar((s - 28) * 8 + o, 2))
        fb = FR + (s % 3) * 8
        return w2reads(s, lambda o: vr(fb + o, 2))

    def scale(R):
        out = []
        for T in range(2):
            b = ACC + (T * 2 + R) * 16
            for i in range(8):
                out.append("v_pk_mul_f32 %s, %s, %s op_sel_hi:[1,0]" % (vr(b + 2 * i, 2), vr(b + 2 * i, 2), vr(GO + 2 * R, 2)))
        return out

    def red_write(R):
        return [("ds_write_b128 v%d, %s offset:%d" % (vRW[T * 4 + m], vr(ACC + (T * 2 + R) * 16 + 4 * m, 4), R * 32768), ("rw", R))
                for T in range(2) for m in range(4)]

    RD = ACC2

    def red_read(R):
        return [("ds_read_b128 %s, v%d offset:%d" % (vr(RD + src * 8 + e * 4, 4), vRD[e], R * 32768 + src * 4096), ("rd", R, src // 2))
                for src in range(4) for e in range(2)]

    def red_fin(R):
        b = RD
        out = [lambda: G.waitlg(("rd", R, 0))]
        for i in range(0, 8, 2):
            out.append("v_pk_add_f32 %s, %s, %s" % (vr(b + i, 2), vr(b + i, 2), vr(b + 8 + i, 2)))
        for i in range(0, 8, 2):
            out.append("v_pk_add_f32 %s, %s, %s" % (vr(b + i, 2), vr(b + i, 2), vr(BG + R * 8 + i, 2)))
        out.append(lambda: G.waitlg(("rd", R, 1)))
        for i in range(0, 8, 2):
            out.append("v_pk_add_f32 %s, %s, %s" % (vr(b + 16 + i, 2), vr(b + 16 + i, 2), vr(b + 24 + i, 2)))
        for i in range(0, 8, 2):
            out.append("v_pk_add_f32 %s, %s, %s" % (vr(b + i, 2), vr(b + i, 2), vr(b + 16 + i, 2)))
        for i in range(4):
            out.append("v_cvt_pk_bf16_f32 v%d, v%d, v%d" % (b + 32 + 4 * R + i, b + 2 * i, b + 2 * i + 1))
        out.append(("buffer_store_dwordx4 %s, v%d, %s, %s offen%s" % (vr(b + 32 + 4 * R, 4), vO, SRD_OUT, sUB if R else sUA, ("", " sc1", " nt", " sc0 sc1")[CFG["outsc"]]), "out"))
        return out

    jit_at = {}
    for s in range(18, 28):
        jit_at.setdefault(2 * (s - 2), []).append(s)
    for s in range(28, 36):
        jit_at.setdefault(2 * (s - 9) + 1, []).append(s)
    G.flush_until(("a", min(AH, 8)))
    for i, (s, R) in enumerate(AL):
        rd = []
        for sj in jit_at.get(i, []):
            rd += jit(sj)
        if i == 36:
            G.side += gprep()
        if i == 54:
            G.flush_side()
            G.side += [("@skip", 2)] + scale(0)
        if i == 56:
            G.flush_side()
            G.side += [("@skip", 2)] + scale(1)
        if i == 64:
            G.flush_side()

            def rbar():
                G.waitlg(("rw", 0))
                G("s_barrier")
            G.side += [("@skip", 2)] + red_write(0) + [("@skip", 2), rbar] + red_read(0) + [("@skip", 2)] + red_fin(0)
        G.need(("a", i))
        if s >= 18:
            G.waitlg(("wr", s))
        for T in range(2):
            d = vr(ACC + (T * 2 + R) * 16, 16)
            cin = d if s > 0 else "0"
            G("v_mfma_f32_32x32x16_bf16 %s, %s, %s, %s" % (d, wfrag(s, T), ar(RING + (i % NRING) * 4, 4), cin))
            for y in rd[2 * T:2 * T + 2]:
                G(*y)
            for _ in range(2):
                if any(x[2][0] == "a" and x[2][1] <= i + AH for x in G.q):
                    G.fill(1)
            G.gap(8 if i in (54, 55) else 4)
        G.ev.add("M%d" % i)
    assert not G.q and not G.psig
    G.fstamp(2, 14)
    G.flush_side()
    for x in red_write(1):
        G(*x)
    G.waitlg(("rw", 1))
    G("s_barrier")
    for x in red_read(1):
        G(*x)
    for x in red_fin(1):
        G.emit_item(x)
    if CFG["stamps"]:
        G.waitvm("out")
        G.fstamp(2, 15)
        G.stamp(15)
        G("v_writelane_b32 %s, %s, 16" % (vStamp, sTO))
        if CFG.get("fine", 0):
            for i in range(16):
                G("v_writelane_b32 %s, s%d, %d" % (vStamp, STMP + 2 * i, 48 + i))
        G("s_lshl_b32 %s, %s, 4" % (sTc, sRB))
        G("s_add_u32 %s, %s, %s" % (sTc, sTc, sCG))
        G("s_lshl_b32 %s, %s, 2" % (sTc, sTc))
        G("s_add_u32 %s, %s, %s" % (sTc, sTc, sW))
        G("s_lshl_b32 %s, %s, 8" % (sTc, sTc))
        G("s_add_u32 %s, %s, 0x%x" % (sTc, sTc, WS_DBG))
        G("v_lshlrev_b32 %s, 2, %s" % (t0, vL))
        G("buffer_store_dword %s, %s, %s, %s offen" % (vStamp, t0, SRD_WS, sTc))
    if CFG.get("dbgt", 0):
        l = G.lab("dt")
        G("s_waitcnt vmcnt(0)")
        G("s_memrealtime s[64:65]")
        G("s_lshl_b32 %s, %s, 2" % (sTc, sR2))
        G("s_and_b32 %s, %s, 3" % (sTb, sR2))
        G("s_or_b32 %s, %s, %s" % (sTb, sTb, sCT))
        G("s_or_b32 %s, %s, %s" % (sTb, sTb, sW))
        G("s_cmp_lg_u32 %s, 0" % sTb)
        G("s_cbranch_scc1 %s" % l)
        G("s_waitcnt lgkmcnt(0)")
        G("v_mov_b32 v2, %s" % sR2)
        G("v_mov_b32 v3, s100")
        G("s_sub_u32 s64, s64, s100")
        G("v_mov_b32 v4, s64")
        G("global_store_dword v2, v3, s[40:41] offset:32")
        G("s_cmp_eq_u32 %s, 0" % sR2)
        G("s_cbranch_scc1 %s" % l)
        G("global_store_dword v2, v4, s[40:41]")
        G("%s:" % l)
    G("s_endpgm")
    return G


def main():
    hdr = open("cdna_kernels/%s.s.ref" % NAME).read().split("\n")
    head = []
    for line in hdr:
        if line.startswith("; @launch"):
            head.append("; @launch grid=(256,1,1) block=(256,1,1) lds=163840")
        elif line.startswith(";"):
            head.append(line)
        else:
            break
    P = prologue()
    body = []
    K = build(False)
    Q = build(True)
    def filt(l):
        if CFG.get("nomfma", 0):
            l = [x for x in l if x.kind != "mfma"]
        if CFG.get("noload", 0):
            l = [x for x in l if not (x.kind == "vmem" and x.op.startswith("buffer_load"))]
        if CFG.get("nostore", 0):
            l = [x for x in l if not (x.kind == "vmem" and x.tag in ("pub1", "pub2"))]
        return l
    kl = pad_hazards(filt(resolve(P.l + K.l)))
    ql = pad_hazards(filt(resolve(P.l + Q.l)))
    idx = [i for i, x in enumerate(ql) if x.text == "L_Q:"][0]
    ql = ql[idx:]
    s = "\n".join(head) + "\n"
    s += '.amdgcn_target "amdgcn-amd-amdhsa--gfx950"\n.text\n.globl %s_kernel\n.p2align 8\n.type %s_kernel,@function\n%s_kernel:\n' % (NAME, NAME, NAME)
    s += render(kl) + "\n.p2align 6\n" + render(ql) + "\nL_end:\n    s_endpgm\n"
    s += """.section .rodata,"a"
.p2align 6
.amdhsa_kernel %s_kernel
  .amdhsa_next_free_vgpr 512
  .amdhsa_next_free_sgpr 102
  .amdhsa_accum_offset 256
  .amdhsa_group_segment_fixed_size 0
  .amdhsa_kernarg_size 96
  .amdhsa_user_sgpr_count 2
  .amdhsa_user_sgpr_kernarg_segment_ptr 1
  .amdhsa_system_sgpr_workgroup_id_x 1
  .amdhsa_float_denorm_mode_32 3
  .amdhsa_float_denorm_mode_16_64 3
.end_amdhsa_kernel
""" % NAME
    open(sys.argv[1], "w").write(s)
    print("wrote", sys.argv[1], "instr K", len(kl), "Q", len(ql))


if __name__ == "__main__":
    main()
```

```python
import sys
from asmdsl import *

NAME = "gated_mix__linear_attn_block__dense_activation_squared_relu__prompt"

CFG = dict(rate1=60, dist=2, qpre=8, ev=12, stamps=0, rot=2, r2_early=2, r2_earlyQ=6, ahead=8, pf=2, ovl=1, outsc=0, side1=2, side2K=5, side2Q=4, pk=1, sigK=14, sigQ=14, sig2=12, rate2=42)
for a in sys.argv[2:]:
    k, v = a.split("=")
    CFG[k] = int(v)

A_GRP = 0x250000
A_OFF = 0x10000
WS_KVP = 0x950000
WS_Z = 0x9D0000
WS_G = 0x9E0000
WS_CNT = 0x9F0000
WS_DBG = 0xA00000
WS_SIZE = 0x1000000
UNIT = 16384
MISC = 9 * UNIT

SRD_X, SRD_QKV, SRD_W1, SRD_WO, SRD_W2, SRD_WS, SRD_OUT, SRD_GATE = [("s[%d:%d]" % (b, b + 3)) for b in range(4, 36, 4)]
WSP = "s[24:25]"
sW, sRW, sCW, sRB, sCG, sP, sR2, sCT = ["s%d" % i for i in range(42, 50)]
sXs, sWs, sRot, sTa, sTb, sM0w, sBH, sBO = ["s%d" % i for i in range(50, 58)]
sCntSig, sCntKV, sCntGsig, sCntH, sCntG, sCntGq = ["s%d" % i for i in range(58, 64)]
STMP = 64
sPollH, sPoll, sTO, sTc = "s96", "s97", "s98", "s99"
sPollG = "s32"
sUA, sUB = "s3", "s2"

vL = "v1"
vXs = ["v%d" % i for i in range(2, 6)]
vW1 = ["v%d" % i for i in range(6, 10)]
vWp2 = ["v%d" % i for i in range(10, 14)]
vXr = [["v%d" % (14 + R * 4 + t) for t in range(4)] for R in range(2)]
vWr = "v22"
vP2r = ["v23", "v24", "v25", "v26"]
vW2s = ["v27", "v28"]
vW2r = ["v29", "v30", "v31"]
vSt = ["v32", "v33"]
vL16, vS4, vA, vGoff = "v34", "v35", "v36", "v37"
vGv = 38
FR = 40
ACC = 64
ACC2 = 128
BIAS = 176
TMP = 208
vStamp = "v255"
vMaskHi = "v254"


def vr(b, n=1):
    return "v%d" % b if n == 1 else "v[%d:%d]" % (b, b + n - 1)


def ar(b, n=1):
    return "a%d" % b if n == 1 else "a[%d:%d]" % (b, b + n - 1)


class Gen(Prog):
    def __init__(self, pfx):
        super().__init__()
        self.q = []
        self.ev = set()
        self.pre_done = False
        self.pfx = pfx
        self.side = []
        self.credit = 0.0
        self.vml = []
        self.psig = None
        self.nl = 0

    def __call__(self, text, tag=None):
        Prog.__call__(self, text, tag)
        if self.l[-1].kind == "vmem":
            self.vml.append(tag)
            if self.psig and len(self.vml) - 1 - self.lastidx(self.psig[0]) >= self.psig[2]:
                self.waitvm(self.psig[0])
        return self

    def lastidx(self, tag):
        return max(i for i, t in enumerate(self.vml) if t == tag)

    def waitvm(self, *tags):
        Prog.waitvm(self, *tags)
        if self.psig and max(self.lastidx(t) for t in tags) >= self.lastidx(self.psig[0]):
            fn = self.psig[1]
            self.psig = None
            fn()

    def signal_when(self, tag, fn, maxyounger):
        assert self.psig is None
        self.psig = (tag, fn, maxyounger)

    def lab(self, n):
        self.nl += 1
        return "L%s_%s%d" % (self.pfx, n, self.nl)

    def push(self, pre, dma, tag, event=None, hook=None):
        self.q.append((pre, dma, tag, event, hook))

    def fill(self, n=1):
        for _ in range(n):
            if not self.q:
                return
            pre, dma, tag, event, hook = self.q[0]
            if event is not None and event not in self.ev:
                return
            self.q.pop(0)
            if hook:
                hook()
            if not self.pre_done:
                for x in pre:
                    self(x)
            self(dma, tag)
            self.pre_done = False
            if self.q:
                for x in self.q[0][0]:
                    self(x)
                self.pre_done = True

    def flush_until(self, tag):
        while any(x[2] == tag for x in self.q):
            n = len(self.q)
            self.fill(1)
            if len(self.q) == n:
                raise ValueError("queue blocked on event %r while flushing to %r" % (self.q[0][3], tag))

    def need(self, *tags):
        for t in tags:
            self.flush_until(t)
        self.waitvm(*tags)

    def barrier(self, name):
        if self.side and isinstance(self.side[0], tuple) and self.side[0][0] == "@bar":
            self.waitlg(self.side[0][1])
            self.side.pop(0)
        self("s_barrier")
        self.ev.add(name)

    def emit_item(self, x):
        if isinstance(x, tuple):
            self(x[0], x[1])
            return 1
        if callable(x):
            x()
            return 3
        self(x)
        if x.startswith("v_mfma"):
            return 99
        return 2 if x.startswith(TRANS) else 1

    def gap(self, budget, rate=0.0):
        self.credit += rate
        while self.credit >= 1.0:
            n = len(self.q)
            self.fill(1)
            self.credit -= 1.0
            if len(self.q) == n:
                self.credit = 0.0
        while budget > 0 and self.side:
            x = self.side[0]
            if isinstance(x, tuple) and x[0] == "@bar":
                return
            if isinstance(x, tuple) and x[0] == "@skip":
                if x[1] <= 1:
                    self.side.pop(0)
                else:
                    self.side[0] = ("@skip", x[1] - 1)
                return
            self.side.pop(0)
            budget -= self.emit_item(x)

    def flush_side(self, every=12):
        n = 0
        while self.side:
            x = self.side[0]
            if isinstance(x, tuple) and x[0] == "@bar":
                self.barrier("X%d" % len(self.l))
                continue
            self.side.pop(0)
            if isinstance(x, tuple) and x[0] == "@skip":
                continue
            self.emit_item(x)
            n += 1
            if n % every == 0:
                self.fill(1)

    def sprinkle(self, lines, every):
        for i, x in enumerate(lines):
            if isinstance(x, tuple):
                self(x[0], x[1])
            elif callable(x):
                x()
            else:
                self(x)
            if (i + 1) % every == 0:
                self.fill(1)

    def stamp(self, i):
        if CFG["stamps"] == 1 or (CFG["stamps"] == 2 and i in (0, 2, 3, 15)):
            self("s_memrealtime s[100:101]")
            self("s_waitcnt lgkmcnt(0)")
            self("v_writelane_b32 %s, s100, %d" % (vStamp, i))
            self("s_memtime s[100:101]")
            self("s_waitcnt lgkmcnt(0)")
            self("v_writelane_b32 %s, s100, %d" % (vStamp, 32 + i))

    def fstamp(self, grp, i):
        if CFG.get("fine", 0) == grp:
            self("%s s[%d:%d]" % ("s_memtime" if grp == 1 else "s_memrealtime", STMP + 2 * i, STMP + 2 * i + 1))

    def poll_issue(self, reg, off):
        self("s_mov_b32 %s, 0" % reg)
        self("s_atomic_add %s, %s, %s glc" % (reg, WSP, off))

    def gate(self, reg, off, shift, target, pending=True):
        top, done = self.lab("g"), self.lab("gd")
        if pending:
            self("s_waitcnt lgkmcnt(0)")
        self("%s:" % top)
        self("s_bfe_u32 %s, %s, 0x%x" % (sXs, reg, (8 << 16) | shift))
        self("s_cmp_ge_u32 %s, %d" % (sXs, target))
        self("s_cbranch_scc1 %s" % done)
        self("s_cmp_eq_u32 %s, 0" % sTO, "cond")
        self("s_cbranch_scc1 %s" % done, "cond")
        self("s_sub_u32 %s, %s, 1" % (sTO, sTO), "cond")
        self("s_mov_b32 %s, 0" % reg, "cond")
        self("s_atomic_add %s, %s, %s glc" % (reg, WSP, off), "cond")
        self("s_waitcnt lgkmcnt(0)", "cond")
        self("s_branch %s" % top, "cond")
        self("%s:" % done)

    def init_issue(self):
        self("s_load_dword %s, s[40:41], 0x0" % sPoll)

    def init_gate(self):
        top, done = self.lab("i"), self.lab("id")
        self("s_waitcnt lgkmcnt(0)")
        self("%s:" % top)
        self("s_cmp_lg_u32 %s, 0" % sPoll)
        self("s_cbranch_scc1 %s" % done)
        self("s_cmp_eq_u32 %s, 0" % sTO, "cond")
        self("s_cbranch_scc1 %s" % done, "cond")
        self("s_sub_u32 %s, %s, 1" % (sTO, sTO), "cond")
        self("s_sleep 8", "cond")
        self("s_atomic_add %s, s[40:41], 0x0 glc" % sPoll, "cond")
        self("s_waitcnt lgkmcnt(0)", "cond")
        self("s_branch %s" % top, "cond")
        self("%s:" % done)

    def signal(self, off, val):
        self("s_atomic_add %s, %s, %s" % ("s0" if val == 1 else "s1", WSP, off))


def bias_lines(dst, sbase):
    out = []
    for hh in range(2):
        if hh == 0:
            out.append("s_mov_b32 exec_hi, 0")
        else:
            out.append("s_mov_b32 exec_hi, -1")
            out.append("s_mov_b32 exec_lo, 0")
        for m in range(4):
            for e in range(2):
                s = "s%d" % (sbase + 4 * m + 2 * hh + e)
                out.append("v_lshlrev_b32_e64 v%d, 16, %s" % (dst + 4 * m + 2 * e, s))
                out.append("v_and_b32 v%d, %s, %s" % (dst + 4 * m + 2 * e + 1, s, vMaskHi))
    out.append("s_mov_b64 exec, -1")
    return out


def prologue():
    P = Prog()
    P("s_cmp_ge_u32 s2, 256")
    P("s_cbranch_scc1 L_end")
    if CFG.get("dbgt", 0):
        P("s_memrealtime s[100:101]")
        P("s_mov_b32 s95, s2")
    for srd, off in ((4, 0), (8, 8), (12, 32), (32, 64), (24, 88), (36, 40), (40, 80), (16, 16), (20, 48), (28, 72), (38, 56)):
        P("s_load_dwordx2 s[%d:%d], s[0:1], %d" % (srd, srd + 1, off))
    P("v_lshrrev_b32 v2, 6, v0")
    P("v_and_b32 %s, 63, v0" % vL)
    P("v_readfirstlane_b32 %s, v2" % sW)
    for srd, size in ((4, 2097152), (8, 1572864), (12, 1835008), (16, 524288), (20, 1835008), (24, WS_SIZE), (28, 2097152), (32, 1024)):
        P("s_mov_b32 s%d, 0x%x" % (srd + 2, size))
        P("s_mov_b32 s%d, 0x20000" % (srd + 3))
    P("s_and_b32 %s, s2, 7" % sTa)
    P("s_lshr_b32 %s, s2, 3" % sTb)
    P("s_and_b32 %s, %s, 1" % (sRB, sTa))
    P("s_lshl_b32 %s, %s, 3" % (sRB, sRB))
    P("s_and_b32 %s, %s, 7" % (sTc, sTb))
    P("s_add_u32 %s, %s, %s" % (sRB, sRB, sTc))
    P("s_lshr_b32 %s, %s, 1" % (sCG, sTa))
    P("s_lshl_b32 %s, %s, 2" % (sCG, sCG))
    P("s_lshr_b32 %s, %s, 3" % (sTc, sTb))
    P("s_add_u32 %s, %s, %s" % (sCG, sCG, sTc))
    P("s_lshr_b32 %s, %s, 1" % (sP, sCG))
    P("s_lshl_b32 %s, %s, 2" % (sR2, sTa))
    P("s_and_b32 %s, %s, 3" % (sTc, sTb))
    P("s_add_u32 %s, %s, %s" % (sR2, sR2, sTc))
    P("s_lshr_b32 %s, %s, 2" % (sCT, sTb))
    if CFG["rot"] == 0:
        P("s_mov_b32 %s, 0" % sRot)
    elif CFG["rot"] == 1:
        P("s_mov_b32 %s, %s" % (sRot, sTa))
    elif CFG["rot"] == 3:
        P("s_xor_b32 %s, %s, %s" % (sRot, sRB, sCG))
        P("s_and_b32 %s, %s, 1" % (sRot, sRot))
        P("s_lshl_b32 %s, %s, 2" % (sRot, sRot))
        P("s_add_u32 %s, %s, %s" % (sRot, sRot, sTa))
    elif CFG["rot"] == 4:
        P("s_add_u32 %s, %s, %s" % (sRot, sRB, sCG))
        P("s_lshl_b32 %s, %s, 1" % (sRot, sRot))
        P("s_bfe_u32 %s, %s, 0x10002" % (sTc, sCG))
        P("s_add_u32 %s, %s, %s" % (sRot, sRot, sTc))
    else:
        P("s_lshl_b32 %s, %s, 1" % (sRot, sCG))
        P("s_add_u32 %s, %s, %s" % (sRot, sRot, sRB))
        P("s_bfe_u32 %s, %s, 0x10002" % (sTc, sCG))
        P("s_add_u32 %s, %s, %s" % (sRot, sRot, sTc))
    P("s_lshr_b32 %s, %s, 1" % (sRW, sW))
    P("s_and_b32 %s, %s, 1" % (sCW, sW))
    P("s_lshl_b32 %s, %s, 12" % (sM0w, sW))
    P("s_mov_b32 %s, 0x8000" % sTO)
    P("v_lshlrev_b32 %s, 4, %s" % (vL16, vL))
    t0, t1, t2, t3 = "v240", "v241", "v242", "v243"
    P("v_lshrrev_b32 %s, 3, %s" % (t0, vL))
    P("v_lshrrev_b32 %s, 4, %s" % (t1, vL))
    P("v_and_b32 %s, 7, %s" % (t2, vL))
    P("v_xor_b32 %s, %s, %s" % (t2, t2, t1))
    P("v_lshlrev_b32 %s, 4, %s" % (t2, t2))
    P("s_lshl_b32 %s, %s, 15" % (sTc, sW))
    P("v_lshl_add_u32 %s, %s, 10, %s" % (t2, t0, t2))
    P("v_add_u32 %s, %s, %s" % (vXs[0], sTc, t2))
    P("v_xor_b32 %s, 64, %s" % (vXs[1], vXs[0]))
    P("v_add_u32 %s, 0x2000, %s" % (vXs[1], vXs[1]))
    P("v_add_u32 %s, 0x4000, %s" % (vXs[2], vXs[0]))
    P("v_add_u32 %s, 0x4000, %s" % (vXs[3], vXs[1]))
    P("s_bitcmp1_b32 %s, 0" % sCG)
    P("s_cbranch_scc1 L_Q")
    return P


def chunk_pre(c, pitch, with_x):
    pre = ["s_add_u32 %s, %s, %d" % (sTa, sRot, c), "s_and_b32 %s, %s, 7" % (sTa, sTa)]
    if with_x:
        pre += ["s_lshl_b32 %s, %s, 10" % (sXs, sRB), "s_add_u32 %s, %s, %s" % (sXs, sXs, sTa), "s_lshl_b32 %s, %s, 7" % (sXs, sXs)]
    pre += ["s_mul_i32 %s, %s, %d" % (sWs, sTa, 64 * pitch)]
    return pre


def build(isQ):
    G = Gen("Q" if isQ else "K")
    t0, t1, t2, t3, t4 = "v240", "v241", "v242", "v243", "v244"
    srdA, pitchA = (SRD_W1, 3584) if isQ else (SRD_QKV, 3072)
    srdB, pitchB = (SRD_QKV, 3072) if isQ else (SRD_W1, 3584)
    if isQ:
        G("L_Q:")
    if CFG["stamps"]:
        G("v_mov_b32 %s, 0" % vStamp)
    G("v_bfe_u32 %s, %s, 2, 2" % (t2, vL))
    G("s_lshl_b32 %s, %s, 4" % (sTc, sW))
    G("v_add_u32 %s, %s, %s" % (t2, sTc, t2))
    G("v_and_b32 %s, 3, %s" % (t3, vL))
    G("v_lshlrev_b32 %s, 4, %s" % (t3, t3))
    G("s_and_b32 %s, %s, 1" % (sTb, sP))
    if isQ:
        G("s_mul_i32 %s, %s, 448" % (sTa, sP))
        G("s_mul_i32 %s, %s, 192" % (sTc, sTb))
        G("s_add_u32 %s, %s, %s" % (sTa, sTa, sTc))
        G("v_lshl_add_u32 %s, %s, 6, %s" % (t4, t1, t3))
    else:
        G("s_lshl_b32 %s, %s, 7" % (sTa, sP))
        G("s_add_u32 %s, %s, 1024" % (sTa, sTa))
        G("v_and_b32 %s, 1, %s" % (t4, t1))
        G("v_lshl_add_u32 %s, %s, 6, %s" % (t4, t4, t3))
        G("v_lshrrev_b32 %s, 5, %s" % (t0, vL))
        G("v_lshl_add_u32 %s, %s, 10, %s" % (t4, t0, t4))
    G("v_mul_u32_u24 %s, %d, %s" % (vW1[0], pitchA, t2))
    G("v_add3_u32 %s, %s, %s, %s" % (vW1[0], vW1[0], t4, sTa))
    for i in range(1, 4):
        G("v_add_u32 %s, %d, %s" % (vW1[i], 4 * i * pitchA, vW1[0]))
    if isQ:
        G("s_lshl_b32 %s, %s, 6" % (sTc, sCW))
        G("s_add_u32 %s, %s, %s" % (sUA, sTa, sTc))
        G("s_add_u32 %s, %s, 128" % (sBH, sUA))
    else:
        G("s_mul_i32 %s, %s, 448" % (sTa, sP))
        G("s_xor_b32 %s, %s, 1" % (sTc, sTb))
        G("s_lshl_b32 %s, %s, 8" % (sTc, sTc))
        G("s_add_u32 %s, %s, %s" % (sTa, sTa, sTc))
        G("s_lshl_b32 %s, %s, 7" % (sTc, sCW))
        G("s_add_u32 %s, %s, %s" % (sUA, sTa, sTc))
        G("s_add_u32 %s, %s, 64" % (sBH, sTa))
        G("s_and_b32 %s, %s, 0xffffff80" % (sBO, sTa))
    G("s_lshl_b32 %s, %s, 4" % (sTc, sRB))
    G("s_add_u32 %s, %s, %s" % (sTc, sTc, sCG))
    G("s_lshl_b32 %s, %s, 2" % (sTc, sTc))
    G("s_add_u32 %s, %s, %s" % (sTc, sTc, sW))
    G("s_lshl_b32 %s, %s, 11" % (sPoll, sTc))
    G("s_lshl_b32 %s, %s, 3" % (sPollH, sTc))
    G("s_waitcnt lgkmcnt(0)")
    G("s_mov_b32 s0, 1")
    G("s_mov_b32 s1, 0x%x" % (0x10000 if isQ else 0x100))
    if not isQ:
        G("s_or_b32 %s, s2, %s" % (sTc, sW))
        G("s_cmp_lg_u32 %s, 0" % sTc)
        G("s_cbranch_scc1 LK_noinit")
        G("v_lshlrev_b32 v245, 8, %s" % vL, "cond")
        G("v_mov_b32 v246, 0", "cond")
        G("s_mov_b32 %s, 0x%x" % (sTc, WS_CNT), "cond")
        G.l.append(Ins("buffer_store_dword v246, v245, %s, %s offen sc1" % (SRD_WS, sTc), "cond"))
        G("s_add_u32 %s, %s, 0x4000" % (sTc, sTc), "cond")
        G.l.append(Ins("buffer_store_dword v246, v245, %s, %s offen sc1" % (SRD_WS, sTc), "cond"))
        G("s_add_u32 %s, %s, 0x4000" % (sTc, sTc), "cond")
        G.l.append(Ins("buffer_store_dword v246, v245, %s, %s offen sc1" % (SRD_WS, sTc), "cond"))
        G("LK_noinit:")
    GX0, GX1, GW = TMP, TMP + 4, TMP + 8
    G("buffer_load_dwordx4 %s, %s, %s, 0 offen" % (vr(GW, 4), vL16, SRD_GATE), "g")
    G("s_load_dwordx16 s[%d:%d], s[36:37], %s" % (STMP, STMP + 15, sUA))
    G("s_load_dwordx16 s[%d:%d], s[36:37], %s" % (STMP + 16, STMP + 31, sBH))

    def prefetch():
        pf = CFG["pf"]
        if not pf:
            return 0
        pv, pd = "v247", "v253"
        lw = [G.lab("pw") for _ in range(4)]
        le = G.lab("pe")

        def setsrd(b):
            G("s_mov_b32 s32, s%d" % b, "cond")
            G("s_mov_b32 s33, s%d" % (b + 1), "cond")
            G("s_mov_b32 s34, s%d" % (b + 2), "cond")
        G("s_lshl_b32 %s, s2, 6" % sTc)
        G("v_add_u32 %s, %s, %s" % (pv, sTc, vL))
        G("s_cmp_eq_u32 %s, 1" % sW)
        G("s_cbranch_scc1 %s" % lw[1])
        G("s_cmp_eq_u32 %s, 2" % sW, "cond")
        G("s_cbranch_scc1 %s" % lw[2], "cond")
        G("s_cmp_eq_u32 %s, 3" % sW, "cond")
        G("s_cbranch_scc1 %s" % lw[3], "cond")
        if pf == 1:
            setsrd(4)
        else:
            G("s_lshr_b32 %s, s2, 3" % sTc, "cond")
            G("s_mul_i32 %s, %s, 56" % (sTc, sTc), "cond")
            G("v_min_u32 %s, 55, %s" % (pv, vL), "cond")
            G("v_add_u32 %s, %s, %s" % (pv, sTc, pv), "cond")
            G("v_lshl_add_u32 %s, %s, 3, 3" % (pv, pv), "cond")
            setsrd(20)
        G("s_branch %s" % le, "cond")
        G("%s:" % lw[1])
        lo = G.lab("po")
        G("s_cmp_ge_u32 s2, 192", "cond")
        G("s_cbranch_scc1 %s" % lo, "cond")
        if pf == 2:
            G("v_lshrrev_b32 %s, 3, %s" % (pd, pv), "cond")
            G("v_lshl_add_u32 %s, %s, 4, %s" % (pv, pd, pv), "cond")
        setsrd(8)
        G("s_branch %s" % le, "cond")
        G("%s:" % lo)
        G("v_subrev_u32 %s, %d, %s" % (pv, 192 * 64, pv), "cond")
        setsrd(16)
        G("s_branch %s" % le, "cond")
        G("%s:" % lw[2])
        setsrd(12)
        G("s_branch %s" % le, "cond")
        G("%s:" % lw[3])
        setsrd(20)
        G("%s:" % le)
        G("v_lshlrev_b32 %s, 7, %s" % (pv, pv))
        G("buffer_load_dword %s, %s, %s, 0 offen" % (pd, pv, SRD_GATE), "pf")
        lw = [G.lab("pw") for _ in range(4)]
        le = G.lab("pe")
        G("s_cmp_eq_u32 %s, 1" % sW)
        G("s_cbranch_scc1 %s" % lw[1])
        G("s_cmp_eq_u32 %s, 2" % sW, "cond")
        G("s_cbranch_scc1 %s" % lw[2], "cond")
        G("s_cmp_eq_u32 %s, 3" % sW, "cond")
        G("s_cbranch_scc1 %s" % lw[3], "cond")
        G("v_mul_u32_u24 %s, 0x%x, %s" % (pv, A_GRP, vL), "cond")
        setsrd(24)
        G("s_branch %s" % le, "cond")
        G("%s:" % lw[1])
        G("s_lshl_b32 %s, %s, 16" % (sTc, sR2), "cond")
        G("v_lshl_add_u32 %s, %s, 26, %s" % (pv, vL, sTc), "cond")
        setsrd(28)
        G("s_branch %s" % le, "cond")
        G("%s:" % lw[2])
        G("s_lshr_b32 %s, s2, 3" % sTc, "cond")
        G("s_lshl_b32 %s, %s, 4" % (sTc, sTc), "cond")
        G("v_min_u32 %s, 15, %s" % (pv, vL), "cond")
        G("v_add_u32 %s, %s, %s" % (pv, sTc, pv), "cond")
        G("v_lshl_add_u32 %s, %s, 3, 3" % (pv, pv), "cond")
        G("v_lshlrev_b32 %s, 7, %s" % (pv, pv), "cond")
        setsrd(16)
        G("s_branch %s" % le, "cond")
        G("%s:" % lw[3])
        if pf == 1:
            G("s_lshr_b32 %s, s2, 3" % sTc, "cond")
            G("s_mul_i32 %s, %s, 56" % (sTc, sTc), "cond")
            G("v_min_u32 %s, 55, %s" % (pv, vL), "cond")
            G("v_add_u32 %s, %s, %s" % (pv, sTc, pv), "cond")
            G("v_lshl_add_u32 %s, %s, 3, 3" % (pv, pv), "cond")
            G("v_lshlrev_b32 %s, 7, %s" % (pv, pv), "cond")
            setsrd(20)
        else:
            G("v_lshlrev_b32 %s, 26, %s" % (pv, vL), "cond")
            setsrd(8 if isQ else 12)
        G("%s:" % le)
        G("buffer_load_dword %s, %s, %s, 0 offen" % (pd, pv, SRD_GATE), "pf")
        return 2

    for c in range(8):
        ev = None if c <= CFG["dist"] else "B%d" % (c - CFG["dist"])
        for i in range(4):
            pre = chunk_pre(c, pitchA, True) if i == 0 else []
            G.push(pre + ["s_add_u32 m0, %s, %d" % (sM0w, (c % 4) * UNIT + i * 1024)],
                   "buffer_load_dwordx4 %s, %s, %s offen lds" % (vXs[i], SRD_X, sXs), ("c1", c), ev)
            G.push(["s_add_u32 m0, %s, %d" % (sM0w, (4 + c % 4) * UNIT + i * 1024)],
                   "buffer_load_dwordx4 %s, %s, %s offen lds" % (vW1[i], srdA, sWs), ("c1", c), ev)
    npf = 0
    if CFG["pf"] == 1:
        npf = prefetch()
    G.fill(8)
    if CFG["pf"] == 2:
        npf = prefetch()
    G("buffer_load_dwordx4 %s, %s, %s, %s offen" % (vr(GX0, 4), vL16, SRD_X, sPoll), "g")
    G("buffer_load_dwordx4 %s, %s, %s, %s offen offset:1024" % (vr(GX1, 4), vL16, SRD_X, sPoll), "g")
    if not isQ:
        G("s_or_b32 %s, s2, %s" % (sTc, sW))
        G("s_cmp_lg_u32 %s, 0" % sTc)
        G("s_cbranch_scc1 LK_noinit2")
        G("s_waitcnt vmcnt(%d)" % (11 + npf), "cond")
        G("s_atomic_add s0, s[40:41], 0x0", "cond")
        G("LK_noinit2:")
    G.stamp(0)
    G("s_lshl_b32 %s, %s, 9" % (sUB, sBH))
    G("s_lshl_b32 %s, %s, 9" % (sUA, sUA))
    h, s32 = "v245", "v246"
    G("v_lshrrev_b32 %s, 5, %s" % (h, vL))
    G("v_and_b32 %s, 31, %s" % (s32, vL))
    G("v_lshlrev_b32 %s, 2, %s" % (vS4, s32))
    G("v_mov_b32 %s, 0xffff0000" % vMaskHi)
    G("v_bfe_u32 %s, %s, 1, 3" % (t0, s32))
    G("v_xor_b32 %s, %s, %s" % (t0, t0, h))
    G("v_lshlrev_b32 %s, 4, %s" % (t0, t0))
    G("v_lshl_add_u32 %s, %s, 7, %s" % (t0, s32, t0))
    G("v_add_u32 %s, %s, %s" % (vXr[0][0], sM0w, t0))
    G("v_xor_b32 %s, 0x1000, %s" % (vXr[1][0], vXr[0][0]))
    for R in range(2):
        for t in range(1, 4):
            G("v_xor_b32 %s, %d, %s" % (vXr[R][t], t << 5, vXr[R][0]))
    G("v_bfe_u32 %s, %s, 2, 2" % (t0, vL))
    G("v_lshlrev_b32 %s, 6, %s" % (t4, t0))
    G("v_and_b32 %s, 1, %s" % (t0, t1))
    G("v_lshl_add_u32 %s, %s, 5, %s" % (t4, t0, t4))
    G("v_lshrrev_b32 %s, 1, %s" % (t0, t3))
    G("v_add_u32 %s, %s, %s" % (t4, t4, t0))
    G("v_lshl_add_u32 %s, %s, 11, %s" % (t0, h, t4))
    G("s_lshl_b32 %s, %s, 8" % (sTc, sCW))
    G("s_add_u32 %s, %s, 0x10000" % (sTc, sTc))
    G("v_add_u32 %s, %s, %s" % (vWr, sTc, t0))
    G.fill(2)
    G("s_waitcnt lgkmcnt(0)")
    for x in bias_lines(BIAS, STMP) + bias_lines(BIAS + 16, STMP + 16):
        G(x)
    G.fill(2)

    S = G.side.append
    if isQ:
        S("v_lshl_add_u32 %s, %s, 10, %s" % (vP2r[0], h, t4))
        S("s_lshl_b32 %s, %s, 9" % (sTc, sCW))
        S("v_add_u32 %s, %s, %s" % (vP2r[0], sTc, vP2r[0]))
        S("v_add_u32 %s, 0x10000, %s" % (vP2r[1], vP2r[0]))
    else:
        S("s_lshl_b32 %s, %s, 1" % (sTc, sCW))
        S("s_add_u32 %s, %s, %s" % (sTc, sTc, sTb))
        S("s_lshl_b32 %s, %s, 8" % (sTc, sTc))
        S("v_add_u32 %s, %s, %s" % (vP2r[0], sTc, t0))
        S("v_add_u32 %s, 0x10000, %s" % (vP2r[1], vP2r[0]))
        S("s_add_u32 %s, %s, 1" % (sTc, sTb))
        S("s_lshl_b32 %s, %s, 8" % (sTc, sTc))
        S("v_add_u32 %s, %s, %s" % (vP2r[2], sTc, t0))
        S("v_add_u32 %s, 0x10000, %s" % (vP2r[3], vP2r[2]))
    S("v_lshl_add_u32 %s, %s, 8, %s" % (t0, h, t4))
    S("v_add_u32 %s, %s, %s" % (vW2r[0], sM0w, t0))
    S("v_add_u32 %s, 0x10000, %s" % (vW2r[1], vW2r[0]))
    S("v_add_u32 %s, 0x20000, %s" % (vW2r[2], vW2r[0]))
    if isQ:
        S("v_bfe_u32 %s, %s, 2, 3" % (t0, vL))
        S("s_lshl_b32 %s, %s, 4" % (sTc, sW))
        S("v_add_u32 %s, %s, %s" % (t0, sTc, t0))
        S("v_mul_u32_u24 %s, %d, %s" % (vWp2[0], pitchB, t0))
        S("v_lshl_add_u32 %s, %s, 6, %s" % (t4, h, t3))
        S("s_lshl_b32 %s, %s, 7" % (sTc, sP))
        S("v_add3_u32 %s, %s, %s, %s" % (vWp2[0], vWp2[0], t4, sTc))
        S("v_add_u32 %s, %d, %s" % (vWp2[1], 8 * pitchB, vWp2[0]))
    else:
        S("v_mul_u32_u24 %s, %d, %s" % (vWp2[0], pitchB, t2))
        S("v_lshl_add_u32 %s, %s, 6, %s" % (t4, t1, t3))
        S("v_add3_u32 %s, %s, %s, %s" % (vWp2[0], vWp2[0], t4, sBO))
        for i in range(1, 4):
            S("v_add_u32 %s, %d, %s" % (vWp2[i], 4 * i * pitchB, vWp2[0]))
    S("v_bfe_u32 %s, %s, 2, 3" % (t0, vL))
    S("v_lshl_add_u32 %s, %s, 6, %s" % (t4, h, t3))
    S("v_lshl_add_u32 %s, %s, 10, %s" % (t0, t0, t4))
    S("s_lshl_b32 %s, %s, 7" % (sTc, sCT))
    S("v_add_u32 %s, %s, %s" % (vW2s[0], sTc, t0))
    S("v_add_u32 %s, 0x2000, %s" % (vW2s[1], vW2s[0]))
    S("s_lshr_b32 %s, %s, 2" % (sTc, sRB))
    S("s_mul_i32 %s, %s, %d" % (sTc, sTc, A_GRP))
    S("s_and_b32 %s, %s, 3" % (sBH, sRB))
    S("s_lshl_b32 %s, %s, 2" % (sBH, sBH))
    S("s_add_u32 %s, %s, %s" % (sBH, sBH, sW))
    S("s_lshl_b32 %s, %s, 10" % (sBH, sBH))
    S("s_add_u32 %s, %s, %s" % (sTc, sTc, sBH))
    S("s_add_u32 %s, %s, 0x%x" % (sTc, sTc, A_OFF))
    S("v_add_u32 %s, %s, %s" % (vSt[0], sTc, vL16))
    S("v_xor_b32 %s, 0x400, %s" % (vSt[1], vSt[0]))
    S("s_lshr_b32 %s, %s, 3" % (sTc, sR2))
    S("s_mul_i32 %s, %s, %d" % (sTc, sTc, A_GRP))
    S("s_and_b32 %s, %s, 7" % (sBH, sR2))
    S("s_lshl_b32 %s, %s, 11" % (sBH, sBH))
    S("s_add_u32 %s, %s, %s" % (sTc, sTc, sBH))
    S("s_add_u32 %s, %s, 0x%x" % (sTc, sTc, A_OFF))
    S("v_add_u32 %s, %s, %s" % (vA, sTc, vL16))
    S("s_mul_i32 %s, %s, %d" % (sBH, sW, 28 * UNIT))
    S("s_lshl_b32 %s, %s, 17" % (sBO, sW))
    S(lambda: G.ev.add("setup"))
    S("s_add_u32 %s, %s, 0x%x" % (sPollH, sPollH, WS_G))
    S("v_cmp_eq_u32 vcc, 63, %s" % vL)
    S("v_mov_b32 %s, %s" % (t0, sPollH))
    S("v_mov_b32 %s, 0x7fffff00" % t4)
    S("v_cndmask_b32 %s, %s, %s, vcc" % (vGoff, t4, t0))
    S("s_lshl_b32 %s, %s, 1" % (sTc, sRB))
    S("s_add_u32 %s, %s, %s" % (sCntGq, sTc, sRW))
    S("s_lshl_b32 %s, %s, 2" % (sCntSig, sCntGq))
    S("s_lshr_b32 %s, %s, 2" % (sPoll, sCG))
    S("s_add_u32 %s, %s, %s" % (sCntSig, sCntSig, sPoll))
    S("s_lshr_b32 %s, %s, 3" % (sPoll, sCG))
    S("s_add_u32 %s, %s, %s" % (sCntGsig, sTc, sPoll))
    S("s_lshl_b32 %s, %s, 1" % (sCntKV, sP))
    S("s_add_u32 %s, %s, %s" % (sCntKV, sCntKV, sCW))
    S("s_lshl_b32 %s, %s, 2" % (sCntH, sR2))
    S("s_add_u32 %s, %s, %s" % (sCntH, sCntH, sW))
    S("s_mov_b32 %s, %s" % (sCntG, sR2))
    for s, b in ((sCntSig, 0), (sCntKV, 128), (sCntGsig, 144), (sCntH, 0), (sCntG, 144), (sCntGq, 144)):
        S("s_lshl_b32 %s, %s, 8" % (s, s))
        S("s_add_u32 %s, %s, 0x%x" % (s, s, WS_CNT + b * 256))
    S(lambda: G.waitvm("g"))
    GU = TMP + 12
    XU = TMP + 20
    for i in range(4):
        S("v_lshlrev_b32 v%d, 16, v%d" % (GU + 2 * i, GW + i))
        S("v_and_b32 v%d, %s, v%d" % (GU + 2 * i + 1, vMaskHi, GW + i))
    for r, GX in enumerate((GX0, GX1)):
        for i in range(4):
            S("v_lshlrev_b32 v%d, 16, v%d" % (XU + 2 * i, GX + i))
            S("v_and_b32 v%d, %s, v%d" % (XU + 2 * i + 1, vMaskHi, GX + i))
        for i in range(8):
            S("v_mul_f32 v%d, v%d, v%d" % (XU + i, XU + i, GU + i))
        for i in range(4):
            S("v_cvt_pk_bf16_f32 v%d, v%d, v%d" % (GX + i, XU + 2 * i, XU + 2 * i + 1))
        for i in range(4):
            S("v_lshlrev_b32 v%d, 16, v%d" % (XU + 2 * i, GX + i))
            S("v_and_b32 v%d, %s, v%d" % (XU + 2 * i + 1, vMaskHi, GX + i))
        for i in range(4):
            S("v_add_f32 v%d, v%d, v%d" % (XU + i, XU + i, XU + 4 + i))
        S("v_add_f32 v%d, v%d, v%d" % (XU, XU, XU + 2))
        S("v_add_f32 v%d, v%d, v%d" % (XU + 1, XU + 1, XU + 3))
        S("v_add_f32 v%d, v%d, v%d" % (vGv + r, XU, XU + 1))
    for mod in ("row_shr:1 row_mask:0xf", "row_shr:2 row_mask:0xf", "row_shr:4 row_mask:0xf", "row_shr:8 row_mask:0xf",
                "row_bcast:15 row_mask:0xa", "row_bcast:31 row_mask:0xc"):
        S(("@skip", 1))
        for r in range(2):
            S("v_add_f32_dpp v%d, v%d, v%d %s bank_mask:0xf" % (vGv + r, vGv + r, vGv + r, mod))
    S("v_cvt_pk_bf16_f32 v%d, v%d, v%d" % (XU, vGv, vGv + 1))
    S("v_lshlrev_b32 v%d, 16, v%d" % (vGv, XU))
    S("v_and_b32 v%d, %s, v%d" % (vGv + 1, vMaskHi, XU))
    for r in range(2):
        S("v_mul_f32 v%d, 0xbfb8aa3b, v%d" % (vGv + r, vGv + r))
    for r in range(2):
        S("v_exp_f32 v%d, v%d" % (vGv + r, vGv + r))
    for r in range(2):
        S("v_add_f32 v%d, 1.0, v%d" % (vGv + r, vGv + r))
    for r in range(2):
        S("v_rcp_f32 v%d, v%d" % (vGv + r, vGv + r))
    S(("@skip", 1))
    S("v_cvt_pk_bf16_f32 v%d, v%d, v%d" % (XU, vGv, vGv + 1))
    S("v_lshlrev_b32 v%d, 16, v%d" % (vGv, XU))
    S("v_and_b32 v%d, %s, v%d" % (vGv + 1, vMaskHi, XU))

    if isQ:
        p2unit = [0, 0, 4, 4, 1, 1, 5, 5]
        for c in range(8):
            ev = "B%d" % (8 - CFG["dist"] + c // 4)
            for i in range(2):
                pre = chunk_pre(c, pitchB, False) if i == 0 else []
                G.push(pre + ["s_lshr_b32 m0, %s, 1" % sM0w, "s_add_u32 m0, m0, %d" % (p2unit[c] * UNIT + (c & 1) * 8192 + i * 1024)],
                       "buffer_load_dwordx4 %s, %s, %s offen lds" % (vWp2[i], srdB, sWs), ("c2", c), ev)
        ulist = [(8, None), (2, "B7"), (6, "B7"), (3, "B8"), (7, "B8"), (0, "C2"), (4, "C3"), (1, "C4"), (5, "C5")]
    else:
        p2unit = [0, 4, 1, 5, 2, 6, 3, 7]
        for c in range(8):
            ev = "B%d" % min(8, 8 - CFG["dist"] + c // 2)
            for i in range(4):
                pre = chunk_pre(c, pitchB, False) if i == 0 else []
                G.push(pre + ["s_add_u32 m0, %s, %d" % (sM0w, p2unit[c] * UNIT + i * 1024)],
                       "buffer_load_dwordx4 %s, %s, %s offen lds" % (vWp2[i], srdB, sWs), ("c2", c), ev)
        ulist = [(8, None)] + [(p2unit[c], "C%d" % (c + 2)) for c in range(8)]

    steps = [("h", u) for u in list(range(8)) + list(range(20, 28)) + list(range(8, 20))] + [("o", i) for i in range(8)]

    def push_w2(s, ev):
        k = (s % 18) // 2
        kind, u = steps[s]
        for j4 in range(2):
            pre = ["s_add_u32 %s, %s, %d" % (sWs, sBH if kind == "h" else sBO, u * UNIT)] if j4 == 0 else []
            G.push(pre + ["s_add_u32 m0, %s, %d" % (sM0w, ulist[k][0] * UNIT + (s & 1) * 2048 + j4 * 1024)],
                   "buffer_load_dwordx4 %s, %s, %s offen lds" % (vW2s[j4], SRD_W2 if kind == "h" else SRD_WO, sWs), ("w2", s), ev)
    for s in range(18):
        push_w2(s, ulist[s // 2][1])

    def reads1(g):
        c, t = g >> 2, g & 3
        fb = FR + (g % 3) * 8
        out = []
        for R in range(2):
            out.append(("ds_read_b128 %s, %s offset:%d" % (ar((g * 2 + R) * 4, 4), vXr[R][t], (c % 4) * UNIT), ("r1", g)))
        for tl in range(2):
            for j4 in range(2):
                out.append(("ds_read_b64_tr_b16 %s, %s offset:%d" % (vr(fb + tl * 4 + j4 * 2, 2), vWr, (c % 4) * UNIT + t * 4096 + j4 * 1024 + tl * 512), ("r1", g)))
        return out

    LAG2 = 4 if isQ else 2
    NB2 = 6 if isQ else 3
    FS2 = 4 if isQ else 8

    def reads2(g):
        c, t = g >> 2, g & 3
        fb = FR2 + ((g + LAG2) % NB2) * FS2
        u = p2unit[c]
        hi = 1 if u >= 4 else 0
        out = []
        if isQ:
            for j4 in range(2):
                out.append(("ds_read_b64_tr_b16 %s, %s offset:%d" % (vr(fb + j4 * 2, 2), vP2r[hi], (u % 4) * UNIT + (c & 1) * 8192 + t * 2048 + j4 * 256), ("r2", g)))
        else:
            for tl in range(2):
                for j4 in range(2):
                    out.append(("ds_read_b64_tr_b16 %s, %s offset:%d" % (vr(fb + tl * 4 + j4 * 2, 2), vP2r[tl * 2 + hi], (u % 4) * UNIT + t * 4096 + j4 * 1024), ("r2", g)))
        return out

    per = 8 if isQ else 4
    FR2 = FR
    G.fill(CFG.get("burst", 4))
    G.stamp(1)
    G.need(("c1", 0))
    G.barrier("B0")
    G.stamp(2)
    for g in range(2):
        for x in reads1(g):
            G(*x)
    for g in range(32):
        if (g + 2) % 4 == 0:
            c = (g + 2) // 4
            G.fstamp(1, 2 * c - 2)
            if c < 8:
                G.need(("c1", c))
            else:
                G.need(*[("c2", cc) for cc in range(per // 4)])
            G.waitlg(("r1", g + 1))
            G.barrier("B%d" % c)
            if c == 5:
                assert "setup" in G.ev
            G.fstamp(1, 2 * c - 1)
        if g + 2 < 32:
            rd = reads1(g + 2)
        else:
            rd = []
            for gg in range((g - 30) * LAG2 // 2, (g - 29) * LAG2 // 2):
                rd += reads2(gg)
        G.waitlg(("r1", g))
        fb = FR + (g % 3) * 8
        n = 0
        for tl in range(2):
            for R in range(2):
                d = vr(ACC + (tl * 2 + R) * 16, 16)
                x = ar((g * 2 + R) * 4, 4)
                wv = vr(fb + tl * 4, 4)
                cin = d if g > 0 else (vr(BIAS + tl * 16, 16) if isQ else "0")
                if isQ:
                    G("v_mfma_f32_32x32x16_bf16 %s, %s, %s, %s" % (d, wv, x, cin))
                else:
                    G("v_mfma_f32_32x32x16_bf16 %s, %s, %s, %s" % (d, x, wv, cin))
                for y in rd[2 * n:2 * n + 2]:
                    G(*y)
                G.gap(CFG["side1"], CFG["rate1"] / 100.0)
                n += 1
    G.flush_side()
    G.ev.add("C0")
    G.stamp(3)
    G.init_issue()

    def relu2_store(base, voff, soff, tag):
        out = []
        for i in range(16):
            out.append("v_max_f32 v%d, 0, v%d" % (base + i, base + i))
        for i in range(8):
            out.append("v_pk_mul_f32 %s, %s, %s" % (vr(base + 2 * i, 2), vr(base + 2 * i, 2), vr(base + 2 * i, 2)))
        for i in range(8):
            out.append("v_cvt_pk_bf16_f32 v%d, v%d, v%d" % (base + i, base + 2 * i, base + 2 * i + 1))
        st = [("buffer_store_dwordx4 %s, %s, %s, %s offen sc1" % (vr(base, 4), voff, SRD_WS, soff), tag),
              "s_add_u32 %s, %s, %d" % (sTb, soff, UNIT),
              ("buffer_store_dwordx4 %s, %s, %s, %s offen sc1" % (vr(base + 4, 4), voff, SRD_WS, sTb), tag)]
        return out, st

    cL2E, cEPS = "v252", "v251"

    def phi_pack(base, tmp):
        out = []
        if CFG["pk"]:
            for i in range(8):
                out.append("v_pk_mul_f32 %s, %s, v[252:253] op_sel_hi:[1,0]" % (vr(tmp + 2 * i, 2), vr(base + 2 * i, 2)))
        else:
            for i in range(16):
                out.append("v_mul_f32 v%d, %s, v%d" % (tmp + i, cL2E, base + i))
        for i in range(16):
            out.append("v_exp_f32_e64 v%d, v%d clamp" % (tmp + i, tmp + i))
            out.append("v_max_f32 v%d, %s, v%d" % (base + i, cEPS, base + i))
        if CFG["pk"]:
            for i in range(8):
                out.append("v_pk_add_f32 %s, %s, %s" % (vr(base + 2 * i, 2), vr(base + 2 * i, 2), vr(tmp + 2 * i, 2)))
        else:
            for i in range(16):
                out.append("v_add_f32 v%d, v%d, v%d" % (base + i, base + i, tmp + i))
        for i in range(8):
            out.append("v_cvt_pk_bf16_f32 v%d, v%d, v%d" % (base + i, base + 2 * i, base + 2 * i + 1))
        return out

    gstore = ("buffer_store_dwordx2 %s, %s, %s, 0 offen sc1" % (vr(vGv, 2), vGoff, SRD_WS), "pub1")

    def pub1_signal():
        G.signal(sCntSig if isQ else sCntKV, 1)
        G.signal(sCntGsig, 1)
        G.fstamp(2, 1)

    S("v_mov_b32 %s, 0x3fb8aa3b" % cL2E)
    S("v_mov_b32 %s, 0x358637bd" % cEPS)
    if isQ:
        sts = [gstore]
        for tl in range(2):
            for R in range(2):
                o, st = relu2_store(ACC + (tl * 2 + R) * 16, vSt[R], sUA if tl == 0 else sUB, "pub1")
                G.side += o
                sts += st
        G.side += sts
        S(lambda: G.fstamp(2, 0))
        S(lambda: G.signal_when("pub1", pub1_signal, CFG["sigQ"]))
    else:
        ONES = TMP + 32
        KD, ZD = TMP, TMP + 16
        for R in range(2):
            G.side += phi_pack(ACC + R * 16, TMP)
        for R in range(2):
            b = ACC + 32 + R * 16
            for i in range(8):
                S("v_cvt_pk_bf16_f32 v%d, v%d, v%d" % (b + i, b + 2 * i, b + 2 * i + 1))
        for i in range(4):
            S("v_mov_b32 v%d, 0x3f803f80" % (ONES + i))
        a0, a1, a2, a3 = "v244", "v245", "v246", "v247"
        S("v_and_b32 %s, 16, %s" % (a0, vL))
        S("v_cmp_eq_u32 vcc, 0, %s" % a0)
        n = 0
        for R in range(2):
            for kk in range(2):
                pk = vr(ACC + R * 16 + kk * 4, 4)
                vv = vr(ACC + 32 + R * 16 + kk * 4, 4)
                S("v_mfma_f32_32x32x16_bf16 %s, %s, %s, %s" % (vr(KD, 16), pk, vv, vr(KD, 16) if n else "0"))
                n += 1
        n = 0
        for R in range(2):
            for kk in range(2):
                pk = vr(ACC + R * 16 + kk * 4, 4)
                S("v_mfma_f32_32x32x16_bf16 %s, %s, %s, %s" % (vr(ZD, 16), vr(ONES, 4), pk, vr(ZD, 16) if n else "0"))
                n += 1
        S("s_lshl_b32 %s, %s, 10" % (sTc, sW))
        S("s_add_u32 %s, %s, %d" % (sTc, sTc, MISC))
        S("v_add_u32 %s, %s, %s" % (a0, sTc, vL16))
        S("v_xor_b32 %s, 0x800, %s" % (a1, a0))
        S("s_lshl_b32 %s, %s, 8" % (sTc, sW))
        S("s_add_u32 %s, %s, %d" % (sTc, sTc, MISC + 4096))
        S("v_lshl_add_u32 %s, %s, 2, %s" % (a2, vL, sTc))
        S("v_xor_b32 %s, 0x200, %s" % (a3, a2))
        for i in range(8):
            S("v_cndmask_b32 v%d, v%d, v%d, vcc" % (KD + i, KD + 8 + i, KD + i))

        def swp():
            G("s_cmp_eq_u32 %s, 0" % sRW)
            G("s_cbranch_scc1 LK_noswap")
            for i in range(4):
                G("v_swap_b32 v%d, v%d" % (KD + i, KD + 4 + i), "cond")
            G("LK_noswap:")
        S(swp)
        S(("ds_write_b128 %s, %s" % (a0, vr(KD + 4, 4)), "kx"))
        S(("ds_write_b32 %s, v%d" % (a2, ZD), "kx"))
        S("s_lshl_b32 %s, %s, 1" % (sTc, sP))
        S("s_add_u32 %s, %s, %s" % (sTc, sTc, sCW))
        S("s_lshl_b32 %s, %s, 4" % (sTc, sTc))
        S("s_add_u32 %s, %s, %s" % (sTc, sTc, sRB))
        S("s_lshl_b32 %s, %s, 1" % (sTb, sTc))
        S("s_add_u32 %s, %s, %s" % (sTb, sTb, sRW))
        S("s_lshl_b32 %s, %s, 10" % (sTb, sTb))
        S("s_add_u32 %s, %s, 0x%x" % (sTb, sTb, WS_KVP))
        S("s_lshl_b32 %s, %s, 7" % (sTc, sTc))
        S("s_add_u32 %s, %s, 0x%x" % (sTc, sTc, WS_Z))

        def xbar():
            G.waitlg("kx")
            G("s_barrier")
        S(xbar)
        S(("ds_read_b128 %s, %s" % (vr(KD + 4, 4), a1), "kr"))
        S(("ds_read_b32 v%d, %s" % (ZD + 1, a3), "kr"))
        S(("@skip", 3))
        S(lambda: G.waitlg("kr"))
        for i in range(4):
            S("v_add_f32 v%d, v%d, v%d" % (KD + i, KD + i, KD + 4 + i))
        S("v_add_f32 v%d, v%d, v%d" % (ZD, ZD, ZD + 1))
        S(("buffer_store_dwordx4 %s, %s, %s, %s offen sc1" % (vr(KD, 4), vL16, SRD_WS, sTb), "pub1"))
        S(("buffer_store_dword v%d, %s, %s, %s offen sc1" % (ZD, vS4, SRD_WS, sTc), "pub1"))
        S(gstore)
        S(lambda: G.fstamp(2, 0))
        S(lambda: G.signal_when("pub1", pub1_signal, CFG["sigK"]))
    if not CFG["ovl"]:
        G.flush_side()
    G.stamp(4)

    for g in range(32):
        if g == 3:
            G.init_gate()
        if g == 29:
            G.poll_issue(sPollH, sCntH)
            if isQ:
                G.poll_issue(sPollG, sCntGq)
                G.poll_issue(sPoll, sCntKV)
        if (g + LAG2) % per == 0:
            i = (g + LAG2) // per
            if i * per < 32:
                G.need(*[("c2", c) for c in range(i * per // 4, (i + 1) * per // 4)])
            G.barrier("C%d" % i)
        rd = reads2(g + LAG2) if g + LAG2 < 32 else []
        G.waitlg(("r2", g))
        fb = FR2 + ((g + LAG2) % NB2) * FS2
        jobs = [(0, 0), (0, 1)] if isQ else [(0, 0), (0, 1), (1, 0)]
        for n, (tl, R) in enumerate(jobs):
            d = vr(ACC2 + n * 16, 16)
            cin = d if g > 0 else ("0" if isQ else vr(BIAS + tl * 16, 16))
            G("v_mfma_f32_32x32x16_bf16 %s, %s, %s, %s" % (d, vr(fb + tl * 4, 4), ar((g * 2 + R) * 4, 4), cin))
            k0 = n * len(rd) // len(jobs) if isQ else 2 * n
            k1 = (n + 1) * len(rd) // len(jobs) if isQ else 2 * n + 2
            for y in rd[k0:k1]:
                G(*y)
            G.gap(CFG["side2Q" if isQ else "side2K"], CFG["rate2"] / 100.0)
    G.barrier("C%d" % (32 // per + 1))
    G.fstamp(2, 2)
    G.stamp(6)

    def w2reads(s, dst):
        k = (s % 18) // 2
        u = ulist[k][0]
        out = []
        for T in range(2):
            for j4 in range(2):
                out.append(("ds_read_b64_tr_b16 %s, %s offset:%d" % (dst(T * 4 + j4 * 2), vW2r[u // 4], (u % 4) * UNIT + (s & 1) * 2048 + j4 * 1024 + T * 512), ("wr", s)))
        return out

    ndrained = [0]

    def drain():
        k = ndrained[0]
        if k > 9:
            return
        ndrained[0] += 1
        if k < 9:
            G.need(("w2", 2 * k), ("w2", 2 * k + 1))
            for s in (2 * k, 2 * k + 1):
                for x in w2reads(s, lambda o, s=s: ar(s * 8 + o, 2)):
                    G(*x)
        if k > 0:
            G.waitlg(("wr", 2 * k - 1))
            G.ev.add("D%d" % (k - 1))

    def pub2_signal():
        G.signal(sCntSig, 2)
        G.fstamp(2, 9)

    NRING = 28
    RING = 144
    AL = [(s, R) for s in range(26) for R in range(2)] + [(26, 0), (27, 0), (26, 1), (27, 1)] + \
         [(s, 0) for s in range(28, 36)] + [(s, 1) for s in range(28, 36)]
    GO = TMP + 40
    GR = TMP + 16
    B2 = TMP + 20
    vRW = [TMP + i for i in range(8)]
    vRD = [TMP + 8 + i for i in range(2)]
    vO = TMP + 12
    vGr = TMP + 13
    vB2 = TMP + 14

    def hook_a(i):
        def f():
            if i == 0:
                G.fstamp(2, 7)
                G.gate(sPollH, sCntH, 0, 4)
                G.fstamp(2, 8)
            if i == 24:
                G.poll_issue(sPollH, sCntH)
                G.poll_issue(sPollG, sCntG)
            if i == 48:
                G.poll_issue(sPollH, sCntH)
            if i == 32:
                G.fstamp(2, 10)
                G.gate(sPollG, sCntG, 0, 32)
                G.gate(sPollH, sCntH, 8, 4, pending=False)
                G.fstamp(2, 11)
                assert "raddr" in G.ev
                G("s_lshl_b32 %s, %s, 8" % (sXs, sR2))
                G("s_add_u32 %s, %s, 0x%x" % (sXs, sXs, WS_G))
                G("buffer_load_dword v%d, %s, %s, %s offen sc1" % (GO, vS4, SRD_WS, sXs), "go")
                G("buffer_load_dword v%d, %s, %s, %s offen offset:128 sc1" % (GO + 2, vS4, SRD_WS, sXs), "go")
                G("buffer_load_dword v%d, v%d, %s, %s offen sc1" % (GR, vGr, SRD_WS, sXs), "go")
                G("buffer_load_dword v%d, v%d, %s, %s offen offset:128 sc1" % (GR + 1, vGr, SRD_WS, sXs), "go")
                G("global_load_dwordx4 %s, v%d, s[38:39]" % (vr(B2, 4), vB2), "go")
            if i == 56:
                G.fstamp(2, 12)
                G.gate(sPollH, sCntH, 16, 4)
                G.fstamp(2, 13)
        return f

    def push_a(i):
        s, R = AL[i]
        kind, u = steps[s]
        G.push(["s_add_u32 %s, %s, %d" % (sTa, sBH if kind == "h" else sBO, (u if kind == "h" else 112 + u) * UNIT)] if (i == 0 or AL[i - 1][0] != s) else [],
               "buffer_load_dwordx4 %s, %s, %s, %s offen offset:%d sc1" % (ar(RING + (i % NRING) * 4, 4), vA, SRD_WS, sTa, R * 1024),
               ("a", i), None if i < NRING else "M%d" % (i - NRING), hook_a(i))

    r2e = CFG["r2_earlyQ" if isQ else "r2_early"]
    s2 = 18
    for _ in range(2 * r2e):
        push_w2(s2, "D%d" % ((s2 - 18) // 2))
        s2 += 1
    for i in range(0, len(AL), 2):
        push_a(i)
        push_a(i + 1)
        if s2 < 36:
            push_w2(s2, "D%d" % ((s2 - 18) // 2))
            s2 += 1

    EV = CFG["ev"]

    def mix(L, ndr):
        marks = {(j + 1) * len(L) // (ndr + 1) for j in range(ndr)} if ndr else set()
        for i, x in enumerate(L):
            if i in marks:
                drain()
                G.fill(1)
            G.emit_item(x)
            if i % EV == EV - 1:
                G.fill(1)

    G.flush_side()
    if not isQ:
        L, sts = [], []
        for n, (R, so) in enumerate(((0, sUA), (1, sUA), (0, sUB))):
            o, st = relu2_store(ACC2 + n * 16, vSt[R], so, "pub2")
            L += o
            sts += st
        drain()
        mix(L, 4)
        if G.psig:
            G.waitvm("pub1")
        for x in sts:
            G.emit_item(x)
        G.signal_when("pub2", pub2_signal, CFG["sig2"])
        G.fstamp(2, 3)
    else:
        L = []
        for R in range(2):
            L += phi_pack(ACC2 + R * 16, TMP)
        GQ = TMP + 40
        PK = ACC
        ZL = TMP
        L.append("v_lshlrev_b32 %s, 2, %s" % (t4, vL))
        L.append("s_lshl_b32 %s, %s, 11" % (sTc, sW))
        L.append("s_add_u32 %s, %s, %d" % (sTc, sTc, MISC))
        L.append("v_add_u32 %s, %s, %s" % (t0, sTc, vL16))
        L.append("v_xor_b32 %s, 0x1000, %s" % (t1, t0))
        L.append("s_lshl_b32 %s, %s, 8" % (sTc, sW))
        L.append("s_add_u32 %s, %s, %d" % (sTc, sTc, MISC + 8192))
        L.append("v_add_u32 %s, %s, %s" % (t2, sTc, t4))
        L.append("v_and_b32 %s, 16, %s" % (t3, vL))
        L.append("v_cmp_eq_u32 vcc, 0, %s" % t3)
        L.append("v_xor_b32 %s, 16, %s" % (t3, t3))
        L.append("v_lshrrev_b32 v245, 5, %s" % vL)
        L.append("v_lshl_add_u32 %s, v245, 2, %s" % (t3, t3))
        L.append("s_lshl_b32 %s, %s, 8" % (sTc, sCW))
        L.append("s_add_u32 %s, %s, %d" % (sTc, sTc, MISC + 8192))
        L.append("v_lshl_add_u32 %s, %s, 2, %s" % (t3, t3, sTc))
        L.append("s_lshl_b32 %s, %s, 1" % (sTb, sP))
        L.append("s_add_u32 %s, %s, %s" % (sTb, sTb, sCW))
        L.append("s_lshl_b32 %s, %s, 15" % (sTc, sTb))
        L.append("s_add_u32 %s, %s, %d" % (sUA, sTc, 112 * UNIT))
        L.append("s_add_u32 %s, %s, %d" % (sUB, sTc, 113 * UNIT))
        L.append("s_lshl_b32 %s, %s, 1" % (sTc, sTb))
        L.append("s_add_u32 %s, %s, %s" % (sTc, sTc, sRW))
        L.append("s_lshl_b32 %s, %s, 14" % (sTb, sTc))
        L.append("s_add_u32 %s, %s, 0x%x" % (sTb, sTb, WS_KVP))
        L.append("s_lshl_b32 %s, %s, 10" % (sTc, sTc))
        L.append("s_add_u32 %s, %s, 0x%x" % (sTc, sTc, WS_Z))
        L.append("s_lshl_b32 s33, %s, 2" % sRB)
        L.append("s_add_u32 s33, s33, %s" % sW)
        L.append("s_lshl_b32 s33, s33, 7")
        L.append("s_add_u32 s33, s33, 0x%x" % WS_G)
        L.append("s_xor_b32 s34, s33, 0x80")
        drain()
        mix(L, 5)
        if G.psig:
            G.waitvm("pub1")
        G.fill(CFG["qpre"])
        G.fstamp(2, 3)
        G.gate(sPollG, sCntGq, 0, 32)
        G.gate(sPoll, sCntKV, 0, 32, pending=False)
        G.fstamp(2, 4)
        for i in range(16):
            if i and i % 4 == 0:
                G("s_add_u32 %s, %s, 4096" % (sTb, sTb))
            G("buffer_load_dwordx4 %s, %s, %s, %s offen offset:%d sc1" % (vr(PK + i * 4, 4), vL16, SRD_WS, sTb, (i % 4) * 1024), ("kvp", i // 8))
        for i in range(4):
            G("buffer_load_dword v%d, %s, %s, %s offen offset:%d sc1" % (ZL + i, t4, SRD_WS, sTc, i * 256), "kvz")
        G("buffer_load_dword v%d, %s, %s, s33 offen sc1" % (GQ, vS4, SRD_WS), "kvz")
        G("buffer_load_dword v%d, %s, %s, s34 offen sc1" % (GQ + 1, vS4, SRD_WS), "kvz")
        drain()
        drain()
        G.fill(4)
        G.waitvm(("kvp", 0))
        for st in (16, 8):
            for i in range(0, st, 2):
                G("v_pk_add_f32 %s, %s, %s" % (vr(PK + i, 2), vr(PK + i, 2), vr(PK + st + i, 2)))
        G.fill(2)
        G.waitvm(("kvp", 1))
        for st in (16, 8):
            for i in range(0, st, 2):
                G("v_pk_add_f32 %s, %s, %s" % (vr(PK + 32 + i, 2), vr(PK + 32 + i, 2), vr(PK + 32 + st + i, 2)))
        G.waitvm("kvz")
        G.fstamp(2, 5)
        G("v_add_f32 v%d, v%d, v%d" % (ZL, ZL, ZL + 1))
        G("v_add_f32 v%d, v%d, v%d" % (ZL + 2, ZL + 2, ZL + 3))
        G("v_add_f32 v%d, v%d, v%d" % (ZL, ZL, ZL + 2))
        G("v_mov_b32 v%d, v%d" % (ZL + 1, ZL))
        for i in range(0, 8, 2):
            G("v_pk_add_f32 %s, %s, %s" % (vr(PK + i, 2), vr(PK + i, 2), vr(PK + 32 + i, 2)))
        G("v_permlane32_swap_b32 v%d, v%d" % (ZL, ZL + 1))
        G("ds_write_b128 %s, %s" % (t0, vr(PK, 4)), "qx")
        G("v_add_f32 v%d, v%d, v%d" % (ZL, ZL, ZL + 1))
        G("ds_write_b128 %s, %s offset:1024" % (t0, vr(PK + 4, 4)), "qx")
        G("ds_write_b32 %s, v%d" % (t2, ZL), "qx")
        G.fill(2)
        G.waitlg("qx")
        G.barrier("BQ")
        G("ds_read_b128 %s, %s" % (vr(PK + 8, 4), t1), "qr")
        G("ds_read_b128 %s, %s offset:1024" % (vr(PK + 12, 4), t1), "qr")
        G("ds_read_b128 %s, %s" % (vr(PK + 16, 4), t3), "qr")
        G("ds_read_b128 %s, %s offset:32" % (vr(PK + 20, 4), t3), "qr")
        G("ds_read_b128 %s, %s offset:512" % (vr(PK + 24, 4), t3), "qr")
        G("ds_read_b128 %s, %s offset:544" % (vr(PK + 28, 4), t3), "qr")
        G.fill(2)
        G.waitlg("qr")
        for i in range(0, 8, 2):
            G("v_pk_add_f32 %s, %s, %s" % (vr(PK + i, 2), vr(PK + i, 2), vr(PK + 8 + i, 2)))
            G("v_pk_add_f32 %s, %s, %s" % (vr(PK + 16 + i, 2), vr(PK + 16 + i, 2), vr(PK + 24 + i, 2)))
        for i in range(4):
            G("v_cvt_pk_bf16_f32 v%d, v%d, v%d" % (PK + i, PK + 2 * i, PK + 2 * i + 1))
            G("v_cvt_pk_bf16_f32 v%d, v%d, v%d" % (PK + 16 + i, PK + 16 + 2 * i, PK + 16 + 2 * i + 1))
        A0, A1 = FR, FR + 4
        for i in range(4):
            G("v_cndmask_b32 v%d, v%d, v%d, vcc" % (A0 + i, PK + 16 + i, PK + i))
        for i in range(4):
            G("v_cndmask_b32 v%d, v%d, v%d, vcc" % (A1 + i, PK + i, PK + 16 + i))
        OD = BIAS
        for hd in range(2):
            for R in range(2):
                G("v_mfma_f32_32x32x16_bf16 %s, %s, %s, 0" % (vr(OD + (hd * 2 + R) * 16, 16), vr(A1 if hd else A0, 4), vr(ACC2 + R * 16 + hd * 4, 4)))
                G.fill(1)
        sts = []
        for hd in range(2):
            for R in range(2):
                b = OD + (hd * 2 + R) * 16
                num, den = (b + 8, b) if hd else (b, b + 8)
                G("v_add_f32 v%d, %s, v%d" % (den, cEPS, den))
                G("v_rcp_f32 v%d, v%d" % (den, den))
                G("v_mul_f32 v%d, v%d, v%d" % (den, den, GQ + R))
                for i in range(4):
                    G("v_pk_mul_f32 %s, %s, %s op_sel_hi:[1,0]" % (vr(num + 2 * i, 2), vr(num + 2 * i, 2), vr(den, 2)))
                for i in range(4):
                    G("v_cvt_pk_bf16_f32 v%d, v%d, v%d" % (ACC2 + 32 + (hd * 2 + R) * 4 + i, num + 2 * i, num + 2 * i + 1))
                G("buffer_store_dwordx4 %s, %s, %s, %s offen sc1" % (vr(ACC2 + 32 + (hd * 2 + R) * 4, 4), vSt[R], SRD_WS, sUB if hd else sUA), "pub2")
        G.signal_when("pub2", pub2_signal, CFG["sig2"])
        G.fstamp(2, 6)
    while ndrained[0] <= 9:
        drain()
        G.fill(2)

    AH = 2 * CFG["ahead"]
    assert AH + 2 <= NRING
    S = G.side.append
    S("v_and_b32 %s, 15, %s" % (t0, vL))
    S("v_lshrrev_b32 %s, 5, %s" % (t1, vL))
    S("v_xor_b32 %s, %s, %s" % (t1, t1, t0))
    S("v_lshlrev_b32 %s, 4, %s" % (t1, t1))
    S("v_lshl_add_u32 %s, %s, 8, %s" % (t1, t0, t1))
    S("v_bfe_u32 %s, %s, 4, 1" % (t0, vL))
    S("v_lshl_add_u32 %s, %s, 14, %s" % (t1, t0, t1))
    S("v_add_u32 v%d, %s, %s" % (vRW[0], sM0w, t1))
    S("v_lshrrev_b32 %s, 3, %s" % (t0, vL))
    S("v_and_b32 %s, 7, %s" % (t1, vL))
    S("s_lshl_b32 %s, %s, 5" % (sTc, sW))
    S("v_lshl_add_u32 v%d, %s, 2, %s" % (vGr, t0, sTc))
    S("s_lshl_b32 %s, %s, 7" % (sUB, sCT))
    S("v_lshl_add_u32 v%d, %s, 4, %s" % (vB2, t1, sUB))
    S(lambda: G.ev.add("raddr"))
    for i in range(1, 8):
        S("v_xor_b32 v%d, %d, v%d" % (vRW[i], i << 5, vRW[0]))
    S("s_lshl_b32 %s, %s, 3" % (sTc, sCW))
    S("v_add_u32 %s, %s, %s" % (t3, sTc, t0))
    S("v_lshlrev_b32 %s, 1, %s" % (t2, t1))
    S("v_xor_b32 %s, %s, %s" % (t2, t2, t3))
    S("v_lshlrev_b32 %s, 4, %s" % (t2, t2))
    S("v_lshl_add_u32 %s, %s, 8, %s" % (t2, t3, t2))
    S("s_lshl_b32 %s, %s, 14" % (sTc, sRW))
    S("v_add_u32 v%d, %s, %s" % (vRD[0], sTc, t2))
    S("v_xor_b32 v%d, 16, v%d" % (vRD[1], vRD[0]))
    S("v_lshlrev_b32 %s, 4, %s" % (t1, t1))
    S("v_lshl_add_u32 v%d, %s, 10, %s" % (vO, t0, t1))
    S("s_lshl_b32 %s, %s, 3" % (sUA, sR2))
    S("s_add_u32 %s, %s, %s" % (sUA, sUA, sW))
    S("s_lshl_b32 %s, %s, 13" % (sUA, sUA))
    S("s_add_u32 %s, %s, %s" % (sUA, sUA, sUB))
    S("s_add_u32 %s, %s, 0x8000" % (sUB, sUA))

    BG = BIAS

    def gprep():
        out = [lambda: G.waitvm("go")]
        for a, b, c in ((GO, GO + 2, GO + 1), (GR, GR + 1, GR + 2)):
            out.append("v_sub_f32 v%d, 1.0, v%d" % (a, a))
            out.append("v_sub_f32 v%d, 1.0, v%d" % (b, b))
            out.append("v_cvt_pk_bf16_f32 v%d, v%d, v%d" % (c, a, b))
            out.append("v_lshlrev_b32 v%d, 16, v%d" % (a, c))
            out.append("v_and_b32 v%d, %s, v%d" % (b, vMaskHi, c))
        for i in range(4):
            out.append("v_lshlrev_b32 v%d, 16, v%d" % (BG + 16 + 2 * i, B2 + i))
            out.append("v_and_b32 v%d, %s, v%d" % (BG + 16 + 2 * i + 1, vMaskHi, B2 + i))
        for R in range(2):
            for i in range(8):
                out.append("v_mul_f32 v%d, v%d, v%d" % (BG + R * 8 + i, GR + R, BG + 16 + i))
        return out

    def wfrag(s, T):
        if s < 18:
            return ar(s * 8 + T * 4, 4)
        if s >= 28:
            return ar((s - 28) * 8 + T * 4, 4)
        return vr(FR + (s % 3) * 8 + T * 4, 4)

    def jit(s):
        G.need(("w2", s))
        if s >= 28:
            return w2reads(s, lambda o: ar((s - 28) * 8 + o, 2))
        fb = FR + (s % 3) * 8
        return w2reads(s, lambda o: vr(fb + o, 2))

    def scale(R):
        out = []
        for T in range(2):
            b = ACC + (T * 2 + R) * 16
            for i in range(8):
                out.append("v_pk_mul_f32 %s, %s, %s op_sel_hi:[1,0]" % (vr(b + 2 * i, 2), vr(b + 2 * i, 2), vr(GO + 2 * R, 2)))
        return out

    def red_write(R):
        return [("ds_write_b128 v%d, %s offset:%d" % (vRW[T * 4 + m], vr(ACC + (T * 2 + R) * 16 + 4 * m, 4), R * 32768), ("rw", R))
                for T in range(2) for m in range(4)]

    RD = ACC2

    def red_read(R):
        return [("ds_read_b128 %s, v%d offset:%d" % (vr(RD + src * 8 + e * 4, 4), vRD[e], R * 32768 + src * 4096), ("rd", R, src // 2))
                for src in range(4) for e in range(2)]

    def red_fin(R):
        b = RD
        out = [lambda: G.waitlg(("rd", R, 0))]
        for i in range(0, 8, 2):
            out.append("v_pk_add_f32 %s, %s, %s" % (vr(b + i, 2), vr(b + i, 2), vr(b + 8 + i, 2)))
        for i in range(0, 8, 2):
            out.append("v_pk_add_f32 %s, %s, %s" % (vr(b + i, 2), vr(b + i, 2), vr(BG + R * 8 + i, 2)))
        out.append(lambda: G.waitlg(("rd", R, 1)))
        for i in range(0, 8, 2):
            out.append("v_pk_add_f32 %s, %s, %s" % (vr(b + 16 + i, 2), vr(b + 16 + i, 2), vr(b + 24 + i, 2)))
        for i in range(0, 8, 2):
            out.append("v_pk_add_f32 %s, %s, %s" % (vr(b + i, 2), vr(b + i, 2), vr(b + 16 + i, 2)))
        for i in range(4):
            out.append("v_cvt_pk_bf16_f32 v%d, v%d, v%d" % (b + 32 + 4 * R + i, b + 2 * i, b + 2 * i + 1))
        out.append(("buffer_store_dwordx4 %s, v%d, %s, %s offen%s" % (vr(b + 32 + 4 * R, 4), vO, SRD_OUT, sUB if R else sUA, ("", " sc1", " nt", " sc0 sc1")[CFG["outsc"]]), "out"))
        return out

    jit_at = {}
    for s in range(18, 28):
        jit_at.setdefault(2 * (s - 2), []).append(s)
    for s in range(28, 36):
        jit_at.setdefault(2 * (s - 9) + 1, []).append(s)
    G.flush_until(("a", min(AH, 8)))
    for i, (s, R) in enumerate(AL):
        rd = []
        for sj in jit_at.get(i, []):
            rd += jit(sj)
        if i == 36:
            G.side += gprep()
        if i == 54:
            G.flush_side()
            G.side += [("@skip", 2)] + scale(0)
        if i == 56:
            G.flush_side()
            G.side += [("@skip", 2)] + scale(1)
        if i == 64:
            G.flush_side()

            def rbar():
                G.waitlg(("rw", 0))
                G("s_barrier")
            G.side += [("@skip", 2)] + red_write(0) + [("@skip", 2), rbar] + red_read(0) + [("@skip", 2)] + red_fin(0)
        G.need(("a", i))
        if s >= 18:
            G.waitlg(("wr", s))
        for T in range(2):
            d = vr(ACC + (T * 2 + R) * 16, 16)
            cin = d if s > 0 else "0"
            G("v_mfma_f32_32x32x16_bf16 %s, %s, %s, %s" % (d, wfrag(s, T), ar(RING + (i % NRING) * 4, 4), cin))
            for y in rd[2 * T:2 * T + 2]:
                G(*y)
            for _ in range(2):
                if any(x[2][0] == "a" and x[2][1] <= i + AH for x in G.q):
                    G.fill(1)
            G.gap(8 if i in (54, 55) else 4)
        G.ev.add("M%d" % i)
    assert not G.q and not G.psig
    G.fstamp(2, 14)
    G.flush_side()
    for x in red_write(1):
        G(*x)
    G.waitlg(("rw", 1))
    G("s_barrier")
    for x in red_read(1):
        G(*x)
    for x in red_fin(1):
        G.emit_item(x)
    if CFG["stamps"]:
        G.waitvm("out")
        G.fstamp(2, 15)
        G.stamp(15)
        G("v_writelane_b32 %s, %s, 16" % (vStamp, sTO))
        if CFG.get("fine", 0):
            for i in range(16):
                G("v_writelane_b32 %s, s%d, %d" % (vStamp, STMP + 2 * i, 48 + i))
        G("s_lshl_b32 %s, %s, 4" % (sTc, sRB))
        G("s_add_u32 %s, %s, %s" % (sTc, sTc, sCG))
        G("s_lshl_b32 %s, %s, 2" % (sTc, sTc))
        G("s_add_u32 %s, %s, %s" % (sTc, sTc, sW))
        G("s_lshl_b32 %s, %s, 8" % (sTc, sTc))
        G("s_add_u32 %s, %s, 0x%x" % (sTc, sTc, WS_DBG))
        G("v_lshlrev_b32 %s, 2, %s" % (t0, vL))
        G("buffer_store_dword %s, %s, %s, %s offen" % (vStamp, t0, SRD_WS, sTc))
    if CFG.get("padT", 0):
        l = G.lab("pt")
        G("%s:" % l)
        G("s_sleep 1")
        G("s_memrealtime s[64:65]")
        G("s_waitcnt lgkmcnt(0)")
        G("s_sub_u32 s64, s64, s100")
        G("s_cmp_lt_u32 s64, %d" % CFG["padT"])
        G("s_cbranch_scc1 %s" % l)
    if CFG.get("dbgt", 0):
        l = G.lab("dt")
        G("s_waitcnt vmcnt(0)")
        G("s_memrealtime s[64:65]")
        G("s_lshl_b32 %s, %s, 2" % (sTc, sR2))
        G("s_and_b32 %s, %s, 3" % (sTb, sR2))
        G("s_or_b32 %s, %s, %s" % (sTb, sTb, sCT))
        G("s_or_b32 %s, %s, %s" % (sTb, sTb, sW))
        G("s_cmp_lg_u32 %s, 0" % sTb)
        G("s_cbranch_scc1 %s" % l)
        G("s_waitcnt lgkmcnt(0)")
        G("v_mov_b32 v2, %s" % sR2)
        G("v_mov_b32 v3, s100")
        G("s_sub_u32 s64, s64, s100")
        G("v_mov_b32 v4, s64")
        G("global_store_dword v2, v3, s[40:41] offset:32")
        G("s_cmp_eq_u32 %s, 0" % sR2)
        G("s_cbranch_scc1 %s" % l)
        G("global_store_dword v2, v4, s[40:41]")
        G("%s:" % l)
    G("s_endpgm")
    return G


def main():
    hdr = open("cdna_kernels/%s.s.ref" % NAME).read().split("\n")
    head = []
    for line in hdr:
        if line.startswith("; @launch"):
            head.append("; @launch grid=(256,1,1) block=(256,1,1) lds=163840")
        elif line.startswith(";"):
            head.append(line)
        else:
            break
    P = prologue()
    body = []
    K = build(False)
    Q = build(True)
    def filt(l):
        if CFG.get("nomfma", 0):
            l = [x for x in l if x.kind != "mfma"]
        if CFG.get("noload", 0):
            l = [x for x in l if not (x.kind == "vmem" and x.op.startswith("buffer_load"))]
        if CFG.get("nostore", 0):
            l = [x for x in l if not (x.kind == "vmem" and x.tag in ("pub1", "pub2"))]
        return l
    kl = pad_hazards(filt(resolve(P.l + K.l)))
    ql = pad_hazards(filt(resolve(P.l + Q.l)))
    idx = [i for i, x in enumerate(ql) if x.text == "L_Q:"][0]
    ql = ql[idx:]
    s = "\n".join(head) + "\n"
    s += '.amdgcn_target "amdgcn-amd-amdhsa--gfx950"\n.text\n.globl %s_kernel\n.p2align 8\n.type %s_kernel,@function\n%s_kernel:\n' % (NAME, NAME, NAME)
    s += render(kl) + "\n.p2align 6\n" + render(ql) + "\nL_end:\n    s_endpgm\n"
    s += """.section .rodata,"a"
.p2align 6
.amdhsa_kernel %s_kernel
  .amdhsa_next_free_vgpr 512
  .amdhsa_next_free_sgpr 102
  .amdhsa_accum_offset 256
  .amdhsa_group_segment_fixed_size 0
  .amdhsa_kernarg_size 96
  .amdhsa_user_sgpr_count 2
  .amdhsa_user_sgpr_kernarg_segment_ptr 1
  .amdhsa_system_sgpr_workgroup_id_x 1
  .amdhsa_float_denorm_mode_32 3
  .amdhsa_float_denorm_mode_16_64 3
.end_amdhsa_kernel
""" % NAME
    open(sys.argv[1], "w").write(s)
    print("wrote", sys.argv[1], "instr K", len(kl), "Q", len(ql))


if __name__ == "__main__":
    main()
```

```python
import sys
from asmdsl import *

NAME = "gated_mix__linear_attn_block__dense_activation_squared_relu__prompt"

CFG = dict(rate1=60, dist=2, qpre=8, ev=12, stamps=0, rot=2, r2_early=2, r2_earlyQ=6, ahead=8, pf=2, ovl=1, outsc=0, side1=2, side2K=5, side2Q=4, pk=1, sigK=14, sigQ=14, sig2=12, rate2=42)
for a in sys.argv[2:]:
    k, v = a.split("=")
    CFG[k] = int(v)

A_GRP = 0x250000
A_OFF = 0x10000
WS_KVP = 0x950000
WS_Z = 0x9D0000
WS_G = 0x9E0000
WS_CNT = 0x9F0000
WS_DBG = 0xA00000
WS_SIZE = 0x1000000
UNIT = 16384
MISC = 9 * UNIT

SRD_X, SRD_QKV, SRD_W1, SRD_WO, SRD_W2, SRD_WS, SRD_OUT, SRD_GATE = [("s[%d:%d]" % (b, b + 3)) for b in range(4, 36, 4)]
WSP = "s[24:25]"
sW, sRW, sCW, sRB, sCG, sP, sR2, sCT = ["s%d" % i for i in range(42, 50)]
sXs, sWs, sRot, sTa, sTb, sM0w, sBH, sBO = ["s%d" % i for i in range(50, 58)]
sCntSig, sCntKV, sCntGsig, sCntH, sCntG, sCntGq = ["s%d" % i for i in range(58, 64)]
STMP = 64
sPollH, sPoll, sTO, sTc = "s96", "s97", "s98", "s99"
sPollG = "s32"
sUA, sUB = "s3", "s2"

vL = "v1"
vXs = ["v%d" % i for i in range(2, 6)]
vW1 = ["v%d" % i for i in range(6, 10)]
vWp2 = ["v%d" % i for i in range(10, 14)]
vXr = [["v%d" % (14 + R * 4 + t) for t in range(4)] for R in range(2)]
vWr = "v22"
vP2r = ["v23", "v24", "v25", "v26"]
vW2s = ["v27", "v28"]
vW2r = ["v29", "v30", "v31"]
vSt = ["v32", "v33"]
vL16, vS4, vA, vGoff = "v34", "v35", "v36", "v37"
vGv = 38
FR = 40
ACC = 64
ACC2 = 128
BIAS = 176
TMP = 208
vStamp = "v255"
vMaskHi = "v254"


def vr(b, n=1):
    return "v%d" % b if n == 1 else "v[%d:%d]" % (b, b + n - 1)


def ar(b, n=1):
    return "a%d" % b if n == 1 else "a[%d:%d]" % (b, b + n - 1)


class Gen(Prog):
    def __init__(self, pfx):
        super().__init__()
        self.q = []
        self.ev = set()
        self.pre_done = False
        self.pfx = pfx
        self.side = []
        self.credit = 0.0
        self.vml = []
        self.psig = None
        self.nl = 0

    def __call__(self, text, tag=None):
        Prog.__call__(self, text, tag)
        if self.l[-1].kind == "vmem":
            self.vml.append(tag)
            if self.psig and len(self.vml) - 1 - self.lastidx(self.psig[0]) >= self.psig[2]:
                self.waitvm(self.psig[0])
        return self

    def lastidx(self, tag):
        return max(i for i, t in enumerate(self.vml) if t == tag)

    def waitvm(self, *tags):
        Prog.waitvm(self, *tags)
        if self.psig and max(self.lastidx(t) for t in tags) >= self.lastidx(self.psig[0]):
            fn = self.psig[1]
            self.psig = None
            fn()

    def signal_when(self, tag, fn, maxyounger):
        assert self.psig is None
        self.psig = (tag, fn, maxyounger)

    def lab(self, n):
        self.nl += 1
        return "L%s_%s%d" % (self.pfx, n, self.nl)

    def push(self, pre, dma, tag, event=None, hook=None):
        self.q.append((pre, dma, tag, event, hook))

    def fill(self, n=1):
        for _ in range(n):
            if not self.q:
                return
            pre, dma, tag, event, hook = self.q[0]
            if event is not None and event not in self.ev:
                return
            self.q.pop(0)
            if hook:
                hook()
            if not self.pre_done:
                for x in pre:
                    self(x)
            self(dma, tag)
            self.pre_done = False
            if self.q:
                for x in self.q[0][0]:
                    self(x)
                self.pre_done = True

    def flush_until(self, tag):
        while any(x[2] == tag for x in self.q):
            n = len(self.q)
            self.fill(1)
            if len(self.q) == n:
                raise ValueError("queue blocked on event %r while flushing to %r" % (self.q[0][3], tag))

    def need(self, *tags):
        for t in tags:
            self.flush_until(t)
        self.waitvm(*tags)

    def barrier(self, name):
        if self.side and isinstance(self.side[0], tuple) and self.side[0][0] == "@bar":
            self.waitlg(self.side[0][1])
            self.side.pop(0)
        self("s_barrier")
        self.ev.add(name)

    def emit_item(self, x):
        if isinstance(x, tuple):
            self(x[0], x[1])
            return 1
        if callable(x):
            x()
            return 3
        self(x)
        if x.startswith("v_mfma"):
            return 99
        return 2 if x.startswith(TRANS) else 1

    def gap(self, budget, rate=0.0):
        self.credit += rate
        while self.credit >= 1.0:
            n = len(self.q)
            self.fill(1)
            self.credit -= 1.0
            if len(self.q) == n:
                self.credit = 0.0
        while budget > 0 and self.side:
            x = self.side[0]
            if isinstance(x, tuple) and x[0] == "@bar":
                return
            if isinstance(x, tuple) and x[0] == "@skip":
                if x[1] <= 1:
                    self.side.pop(0)
                else:
                    self.side[0] = ("@skip", x[1] - 1)
                return
            self.side.pop(0)
            budget -= self.emit_item(x)

    def flush_side(self, every=12):
        n = 0
        while self.side:
            x = self.side[0]
            if isinstance(x, tuple) and x[0] == "@bar":
                self.barrier("X%d" % len(self.l))
                continue
            self.side.pop(0)
            if isinstance(x, tuple) and x[0] == "@skip":
                continue
            self.emit_item(x)
            n += 1
            if n % every == 0:
                self.fill(1)

    def sprinkle(self, lines, every):
        for i, x in enumerate(lines):
            if isinstance(x, tuple):
                self(x[0], x[1])
            elif callable(x):
                x()
            else:
                self(x)
            if (i + 1) % every == 0:
                self.fill(1)

    def stamp(self, i):
        if CFG["stamps"] == 1 or (CFG["stamps"] == 2 and i in (0, 2, 3, 15)):
            self("s_memrealtime s[100:101]")
            self("s_waitcnt lgkmcnt(0)")
            self("v_writelane_b32 %s, s100, %d" % (vStamp, i))
            self("s_memtime s[100:101]")
            self("s_waitcnt lgkmcnt(0)")
            self("v_writelane_b32 %s, s100, %d" % (vStamp, 32 + i))

    def fstamp(self, grp, i):
        if CFG.get("fine", 0) == grp:
            self("%s s[%d:%d]" % ("s_memtime" if grp == 1 else "s_memrealtime", STMP + 2 * i, STMP + 2 * i + 1))

    def poll_issue(self, reg, off):
        self("s_mov_b32 %s, 0" % reg)
        self("s_atomic_add %s, %s, %s glc" % (reg, WSP, off))

    def gate(self, reg, off, shift, target, pending=True):
        top, done = self.lab("g"), self.lab("gd")
        if pending:
            self("s_waitcnt lgkmcnt(0)")
        self("%s:" % top)
        self("s_bfe_u32 %s, %s, 0x%x" % (sXs, reg, (8 << 16) | shift))
        self("s_cmp_ge_u32 %s, %d" % (sXs, target))
        self("s_cbranch_scc1 %s" % done)
        self("s_cmp_eq_u32 %s, 0" % sTO, "cond")
        self("s_cbranch_scc1 %s" % done, "cond")
        self("s_sub_u32 %s, %s, 1" % (sTO, sTO), "cond")
        self("s_mov_b32 %s, 0" % reg, "cond")
        self("s_atomic_add %s, %s, %s glc" % (reg, WSP, off), "cond")
        self("s_waitcnt lgkmcnt(0)", "cond")
        self("s_branch %s" % top, "cond")
        self("%s:" % done)

    def init_issue(self):
        self("s_load_dword %s, s[40:41], 0x0" % sPoll)

    def init_gate(self):
        top, done = self.lab("i"), self.lab("id")
        self("s_waitcnt lgkmcnt(0)")
        self("%s:" % top)
        self("s_cmp_lg_u32 %s, 0" % sPoll)
        self("s_cbranch_scc1 %s" % done)
        self("s_cmp_eq_u32 %s, 0" % sTO, "cond")
        self("s_cbranch_scc1 %s" % done, "cond")
        self("s_sub_u32 %s, %s, 1" % (sTO, sTO), "cond")
        self("s_sleep 8", "cond")
        self("s_atomic_add %s, s[40:41], 0x0 glc" % sPoll, "cond")
        self("s_waitcnt lgkmcnt(0)", "cond")
        self("s_branch %s" % top, "cond")
        self("%s:" % done)

    def signal(self, off, val):
        self("s_atomic_add %s, %s, %s" % ("s0" if val == 1 else "s1", WSP, off))


def bias_lines(dst, sbase):
    out = []
    for hh in range(2):
        if hh == 0:
            out.append("s_mov_b32 exec_hi, 0")
        else:
            out.append("s_mov_b32 exec_hi, -1")
            out.append("s_mov_b32 exec_lo, 0")
        for m in range(4):
            for e in range(2):
                s = "s%d" % (sbase + 4 * m + 2 * hh + e)
                out.append("v_lshlrev_b32_e64 v%d, 16, %s" % (dst + 4 * m + 2 * e, s))
                out.append("v_and_b32 v%d, %s, %s" % (dst + 4 * m + 2 * e + 1, s, vMaskHi))
    out.append("s_mov_b64 exec, -1")
    return out


def prologue():
    P = Prog()
    P("s_cmp_ge_u32 s2, 256")
    P("s_cbranch_scc1 L_end")
    if CFG.get("dbgt", 0):
        P("s_memrealtime s[100:101]")
        P("s_mov_b32 s95, s2")
    for srd, off in ((4, 0), (8, 8), (12, 32), (32, 64), (24, 88), (36, 40), (40, 80), (16, 16), (20, 48), (28, 72), (38, 56)):
        P("s_load_dwordx2 s[%d:%d], s[0:1], %d" % (srd, srd + 1, off))
    P("v_lshrrev_b32 v2, 6, v0")
    P("v_and_b32 %s, 63, v0" % vL)
    P("v_readfirstlane_b32 %s, v2" % sW)
    for srd, size in ((4, 2097152), (8, 1572864), (12, 1835008), (16, 524288), (20, 1835008), (24, WS_SIZE), (28, 2097152), (32, 1024)):
        P("s_mov_b32 s%d, 0x%x" % (srd + 2, size))
        P("s_mov_b32 s%d, 0x20000" % (srd + 3))
    P("s_and_b32 %s, s2, 7" % sTa)
    P("s_lshr_b32 %s, s2, 3" % sTb)
    P("s_and_b32 %s, %s, 1" % (sRB, sTa))
    P("s_lshl_b32 %s, %s, 3" % (sRB, sRB))
    P("s_and_b32 %s, %s, 7" % (sTc, sTb))
    P("s_add_u32 %s, %s, %s" % (sRB, sRB, sTc))
    P("s_lshr_b32 %s, %s, 1" % (sCG, sTa))
    P("s_lshl_b32 %s, %s, 2" % (sCG, sCG))
    P("s_lshr_b32 %s, %s, 3" % (sTc, sTb))
    P("s_add_u32 %s, %s, %s" % (sCG, sCG, sTc))
    P("s_lshr_b32 %s, %s, 1" % (sP, sCG))
    P("s_lshl_b32 %s, %s, 2" % (sR2, sTa))
    P("s_and_b32 %s, %s, 3" % (sTc, sTb))
    P("s_add_u32 %s, %s, %s" % (sR2, sR2, sTc))
    P("s_lshr_b32 %s, %s, 2" % (sCT, sTb))
    if CFG["rot"] == 0:
        P("s_mov_b32 %s, 0" % sRot)
    elif CFG["rot"] == 1:
        P("s_mov_b32 %s, %s" % (sRot, sTa))
    elif CFG["rot"] == 3:
        P("s_xor_b32 %s, %s, %s" % (sRot, sRB, sCG))
        P("s_and_b32 %s, %s, 1" % (sRot, sRot))
        P("s_lshl_b32 %s, %s, 2" % (sRot, sRot))
        P("s_add_u32 %s, %s, %s" % (sRot, sRot, sTa))
    elif CFG["rot"] == 4:
        P("s_add_u32 %s, %s, %s" % (sRot, sRB, sCG))
        P("s_lshl_b32 %s, %s, 1" % (sRot, sRot))
        P("s_bfe_u32 %s, %s, 0x10002" % (sTc, sCG))
        P("s_add_u32 %s, %s, %s" % (sRot, sRot, sTc))
    else:
        P("s_lshl_b32 %s, %s, 1" % (sRot, sCG))
        P("s_add_u32 %s, %s, %s" % (sRot, sRot, sRB))
        P("s_bfe_u32 %s, %s, 0x10002" % (sTc, sCG))
        P("s_add_u32 %s, %s, %s" % (sRot, sRot, sTc))
    P("s_lshr_b32 %s, %s, 1" % (sRW, sW))
    P("s_and_b32 %s, %s, 1" % (sCW, sW))
    P("s_lshl_b32 %s, %s, 12" % (sM0w, sW))
    P("s_mov_b32 %s, 0x8000" % sTO)
    P("v_lshlrev_b32 %s, 4, %s" % (vL16, vL))
    t0, t1, t2, t3 = "v240", "v241", "v242", "v243"
    P("v_lshrrev_b32 %s, 3, %s" % (t0, vL))
    P("v_lshrrev_b32 %s, 4, %s" % (t1, vL))
    P("v_and_b32 %s, 7, %s" % (t2, vL))
    P("v_xor_b32 %s, %s, %s" % (t2, t2, t1))
    P("v_lshlrev_b32 %s, 4, %s" % (t2, t2))
    P("s_lshl_b32 %s, %s, 15" % (sTc, sW))
    P("v_lshl_add_u32 %s, %s, 10, %s" % (t2, t0, t2))
    P("v_add_u32 %s, %s, %s" % (vXs[0], sTc, t2))
    P("v_xor_b32 %s, 64, %s" % (vXs[1], vXs[0]))
    P("v_add_u32 %s, 0x2000, %s" % (vXs[1], vXs[1]))
    P("v_add_u32 %s, 0x4000, %s" % (vXs[2], vXs[0]))
    P("v_add_u32 %s, 0x4000, %s" % (vXs[3], vXs[1]))
    P("s_bitcmp1_b32 %s, 0" % sCG)
    P("s_cbranch_scc1 L_Q")
    return P


def chunk_pre(c, pitch, with_x):
    pre = ["s_add_u32 %s, %s, %d" % (sTa, sRot, c), "s_and_b32 %s, %s, 7" % (sTa, sTa)]
    if with_x:
        pre += ["s_lshl_b32 %s, %s, 10" % (sXs, sRB), "s_add_u32 %s, %s, %s" % (sXs, sXs, sTa), "s_lshl_b32 %s, %s, 7" % (sXs, sXs)]
    pre += ["s_mul_i32 %s, %s, %d" % (sWs, sTa, 64 * pitch)]
    return pre


def build(isQ):
    G = Gen("Q" if isQ else "K")
    t0, t1, t2, t3, t4 = "v240", "v241", "v242", "v243", "v244"
    srdA, pitchA = (SRD_W1, 3584) if isQ else (SRD_QKV, 3072)
    srdB, pitchB = (SRD_QKV, 3072) if isQ else (SRD_W1, 3584)
    if isQ:
        G("L_Q:")
    if CFG["stamps"]:
        G("v_mov_b32 %s, 0" % vStamp)
    G("v_bfe_u32 %s, %s, 2, 2" % (t2, vL))
    G("s_lshl_b32 %s, %s, 4" % (sTc, sW))
    G("v_add_u32 %s, %s, %s" % (t2, sTc, t2))
    G("v_and_b32 %s, 3, %s" % (t3, vL))
    G("v_lshlrev_b32 %s, 4, %s" % (t3, t3))
    G("s_and_b32 %s, %s, 1" % (sTb, sP))
    if isQ:
        G("s_mul_i32 %s, %s, 448" % (sTa, sP))
        G("s_mul_i32 %s, %s, 192" % (sTc, sTb))
        G("s_add_u32 %s, %s, %s" % (sTa, sTa, sTc))
        G("v_lshl_add_u32 %s, %s, 6, %s" % (t4, t1, t3))
    else:
        G("s_lshl_b32 %s, %s, 7" % (sTa, sP))
        G("s_add_u32 %s, %s, 1024" % (sTa, sTa))
        G("v_and_b32 %s, 1, %s" % (t4, t1))
        G("v_lshl_add_u32 %s, %s, 6, %s" % (t4, t4, t3))
        G("v_lshrrev_b32 %s, 5, %s" % (t0, vL))
        G("v_lshl_add_u32 %s, %s, 10, %s" % (t4, t0, t4))
    G("v_mul_u32_u24 %s, %d, %s" % (vW1[0], pitchA, t2))
    G("v_add3_u32 %s, %s, %s, %s" % (vW1[0], vW1[0], t4, sTa))
    for i in range(1, 4):
        G("v_add_u32 %s, %d, %s" % (vW1[i], 4 * i * pitchA, vW1[0]))
    if isQ:
        G("s_lshl_b32 %s, %s, 6" % (sTc, sCW))
        G("s_add_u32 %s, %s, %s" % (sUA, sTa, sTc))
        G("s_add_u32 %s, %s, 128" % (sBH, sUA))
    else:
        G("s_mul_i32 %s, %s, 448" % (sTa, sP))
        G("s_xor_b32 %s, %s, 1" % (sTc, sTb))
        G("s_lshl_b32 %s, %s, 8" % (sTc, sTc))
        G("s_add_u32 %s, %s, %s" % (sTa, sTa, sTc))
        G("s_lshl_b32 %s, %s, 7" % (sTc, sCW))
        G("s_add_u32 %s, %s, %s" % (sUA, sTa, sTc))
        G("s_add_u32 %s, %s, 64" % (sBH, sTa))
        G("s_and_b32 %s, %s, 0xffffff80" % (sBO, sTa))
    G("s_lshl_b32 %s, %s, 4" % (sTc, sRB))
    G("s_add_u32 %s, %s, %s" % (sTc, sTc, sCG))
    G("s_lshl_b32 %s, %s, 2" % (sTc, sTc))
    G("s_add_u32 %s, %s, %s" % (sTc, sTc, sW))
    G("s_lshl_b32 %s, %s, 11" % (sPoll, sTc))
    G("s_lshl_b32 %s, %s, 3" % (sPollH, sTc))
    G("s_waitcnt lgkmcnt(0)")
    G("s_mov_b32 s0, 1")
    G("s_mov_b32 s1, 0x%x" % (0x10000 if isQ else 0x100))
    if not isQ:
        G("s_or_b32 %s, s2, %s" % (sTc, sW))
        G("s_cmp_lg_u32 %s, 0" % sTc)
        G("s_cbranch_scc1 LK_noinit")
        G("v_lshlrev_b32 v245, 8, %s" % vL, "cond")
        G("v_mov_b32 v246, 0", "cond")
        G("s_mov_b32 %s, 0x%x" % (sTc, WS_CNT), "cond")
        G.l.append(Ins("buffer_store_dword v246, v245, %s, %s offen sc1" % (SRD_WS, sTc), "cond"))
        G("s_add_u32 %s, %s, 0x4000" % (sTc, sTc), "cond")
        G.l.append(Ins("buffer_store_dword v246, v245, %s, %s offen sc1" % (SRD_WS, sTc), "cond"))
        G("s_add_u32 %s, %s, 0x4000" % (sTc, sTc), "cond")
        G.l.append(Ins("buffer_store_dword v246, v245, %s, %s offen sc1" % (SRD_WS, sTc), "cond"))
        G("LK_noinit:")
    GX0, GX1, GW = TMP, TMP + 4, TMP + 8
    G("buffer_load_dwordx4 %s, %s, %s, 0 offen" % (vr(GW, 4), vL16, SRD_GATE), "g")
    G("s_load_dwordx16 s[%d:%d], s[36:37], %s" % (STMP, STMP + 15, sUA))
    G("s_load_dwordx16 s[%d:%d], s[36:37], %s" % (STMP + 16, STMP + 31, sBH))

    def prefetch():
        pf = CFG["pf"]
        if not pf:
            return 0
        pv, pd = "v247", "v253"
        lw = [G.lab("pw") for _ in range(4)]
        le = G.lab("pe")

        def setsrd(b):
            G("s_mov_b32 s32, s%d" % b, "cond")
            G("s_mov_b32 s33, s%d" % (b + 1), "cond")
            G("s_mov_b32 s34, s%d" % (b + 2), "cond")
        G("s_lshl_b32 %s, s2, 6" % sTc)
        G("v_add_u32 %s, %s, %s" % (pv, sTc, vL))
        G("s_cmp_eq_u32 %s, 1" % sW)
        G("s_cbranch_scc1 %s" % lw[1])
        G("s_cmp_eq_u32 %s, 2" % sW, "cond")
        G("s_cbranch_scc1 %s" % lw[2], "cond")
        G("s_cmp_eq_u32 %s, 3" % sW, "cond")
        G("s_cbranch_scc1 %s" % lw[3], "cond")
        if pf == 1:
            setsrd(4)
        else:
            G("s_lshr_b32 %s, s2, 3" % sTc, "cond")
            G("s_mul_i32 %s, %s, 56" % (sTc, sTc), "cond")
            G("v_min_u32 %s, 55, %s" % (pv, vL), "cond")
            G("v_add_u32 %s, %s, %s" % (pv, sTc, pv), "cond")
            G("v_lshl_add_u32 %s, %s, 3, 3" % (pv, pv), "cond")
            setsrd(20)
        G("s_branch %s" % le, "cond")
        G("%s:" % lw[1])
        lo = G.lab("po")
        G("s_cmp_ge_u32 s2, 192", "cond")
        G("s_cbranch_scc1 %s" % lo, "cond")
        if pf == 2:
            G("v_lshrrev_b32 %s, 3, %s" % (pd, pv), "cond")
            G("v_lshl_add_u32 %s, %s, 4, %s" % (pv, pd, pv), "cond")
        setsrd(8)
        G("s_branch %s" % le, "cond")
        G("%s:" % lo)
        G("v_subrev_u32 %s, %d, %s" % (pv, 192 * 64, pv), "cond")
        setsrd(16)
        G("s_branch %s" % le, "cond")
        G("%s:" % lw[2])
        setsrd(12)
        G("s_branch %s" % le, "cond")
        G("%s:" % lw[3])
        setsrd(20)
        G("%s:" % le)
        G("v_lshlrev_b32 %s, 7, %s" % (pv, pv))
        G("buffer_load_dword %s, %s, %s, 0 offen" % (pd, pv, SRD_GATE), "pf")
        lw = [G.lab("pw") for _ in range(4)]
        le = G.lab("pe")
        G("s_cmp_eq_u32 %s, 1" % sW)
        G("s_cbranch_scc1 %s" % lw[1])
        G("s_cmp_eq_u32 %s, 2" % sW, "cond")
        G("s_cbranch_scc1 %s" % lw[2], "cond")
        G("s_cmp_eq_u32 %s, 3" % sW, "cond")
        G("s_cbranch_scc1 %s" % lw[3], "cond")
        G("v_mul_u32_u24 %s, 0x%x, %s" % (pv, A_GRP, vL), "cond")
        setsrd(24)
        G("s_branch %s" % le, "cond")
        G("%s:" % lw[1])
        G("s_lshl_b32 %s, %s, 16" % (sTc, sR2), "cond")
        G("v_lshl_add_u32 %s, %s, 26, %s" % (pv, vL, sTc), "cond")
        setsrd(28)
        G("s_branch %s" % le, "cond")
        G("%s:" % lw[2])
        G("s_lshr_b32 %s, s2, 3" % sTc, "cond")
        G("s_lshl_b32 %s, %s, 4" % (sTc, sTc), "cond")
        G("v_min_u32 %s, 15, %s" % (pv, vL), "cond")
        G("v_add_u32 %s, %s, %s" % (pv, sTc, pv), "cond")
        G("v_lshl_add_u32 %s, %s, 3, 3" % (pv, pv), "cond")
        G("v_lshlrev_b32 %s, 7, %s" % (pv, pv), "cond")
        setsrd(16)
        G("s_branch %s" % le, "cond")
        G("%s:" % lw[3])
        if pf == 1:
            G("s_lshr_b32 %s, s2, 3" % sTc, "cond")
            G("s_mul_i32 %s, %s, 56" % (sTc, sTc), "cond")
            G("v_min_u32 %s, 55, %s" % (pv, vL), "cond")
            G("v_add_u32 %s, %s, %s" % (pv, sTc, pv), "cond")
            G("v_lshl_add_u32 %s, %s, 3, 3" % (pv, pv), "cond")
            G("v_lshlrev_b32 %s, 7, %s" % (pv, pv), "cond")
            setsrd(20)
        else:
            G("v_lshlrev_b32 %s, 26, %s" % (pv, vL), "cond")
            setsrd(8 if isQ else 12)
        G("%s:" % le)
        G("buffer_load_dword %s, %s, %s, 0 offen" % (pd, pv, SRD_GATE), "pf")
        return 2

    for c in range(8):
        ev = None if c <= CFG["dist"] else "B%d" % (c - CFG["dist"])
        for i in range(4):
            pre = chunk_pre(c, pitchA, True) if i == 0 else []
            G.push(pre + ["s_add_u32 m0, %s, %d" % (sM0w, (c % 4) * UNIT + i * 1024)],
                   "buffer_load_dwordx4 %s, %s, %s offen lds" % (vXs[i], SRD_X, sXs), ("c1", c), ev)
            G.push(["s_add_u32 m0, %s, %d" % (sM0w, (4 + c % 4) * UNIT + i * 1024)],
                   "buffer_load_dwordx4 %s, %s, %s offen lds" % (vW1[i], srdA, sWs), ("c1", c), ev)
    npf = 0
    if CFG["pf"] == 1:
        npf = prefetch()
    G.fill(8)
    if CFG["pf"] == 2:
        npf = prefetch()
    G("buffer_load_dwordx4 %s, %s, %s, %s offen" % (vr(GX0, 4), vL16, SRD_X, sPoll), "g")
    G("buffer_load_dwordx4 %s, %s, %s, %s offen offset:1024" % (vr(GX1, 4), vL16, SRD_X, sPoll), "g")
    if not isQ:
        G("s_or_b32 %s, s2, %s" % (sTc, sW))
        G("s_cmp_lg_u32 %s, 0" % sTc)
        G("s_cbranch_scc1 LK_noinit2")
        G("s_waitcnt vmcnt(%d)" % (11 + npf), "cond")
        G("s_atomic_add s0, s[40:41], 0x0", "cond")
        if CFG.get("pad0", 0):
            G("s_atomic_add s100, s[40:41], 0x80", "cond")
        G("LK_noinit2:")
    G.stamp(0)
    G("s_lshl_b32 %s, %s, 9" % (sUB, sBH))
    G("s_lshl_b32 %s, %s, 9" % (sUA, sUA))
    h, s32 = "v245", "v246"
    G("v_lshrrev_b32 %s, 5, %s" % (h, vL))
    G("v_and_b32 %s, 31, %s" % (s32, vL))
    G("v_lshlrev_b32 %s, 2, %s" % (vS4, s32))
    G("v_mov_b32 %s, 0xffff0000" % vMaskHi)
    G("v_bfe_u32 %s, %s, 1, 3" % (t0, s32))
    G("v_xor_b32 %s, %s, %s" % (t0, t0, h))
    G("v_lshlrev_b32 %s, 4, %s" % (t0, t0))
    G("v_lshl_add_u32 %s, %s, 7, %s" % (t0, s32, t0))
    G("v_add_u32 %s, %s, %s" % (vXr[0][0], sM0w, t0))
    G("v_xor_b32 %s, 0x1000, %s" % (vXr[1][0], vXr[0][0]))
    for R in range(2):
        for t in range(1, 4):
            G("v_xor_b32 %s, %d, %s" % (vXr[R][t], t << 5, vXr[R][0]))
    G("v_bfe_u32 %s, %s, 2, 2" % (t0, vL))
    G("v_lshlrev_b32 %s, 6, %s" % (t4, t0))
    G("v_and_b32 %s, 1, %s" % (t0, t1))
    G("v_lshl_add_u32 %s, %s, 5, %s" % (t4, t0, t4))
    G("v_lshrrev_b32 %s, 1, %s" % (t0, t3))
    G("v_add_u32 %s, %s, %s" % (t4, t4, t0))
    G("v_lshl_add_u32 %s, %s, 11, %s" % (t0, h, t4))
    G("s_lshl_b32 %s, %s, 8" % (sTc, sCW))
    G("s_add_u32 %s, %s, 0x10000" % (sTc, sTc))
    G("v_add_u32 %s, %s, %s" % (vWr, sTc, t0))
    G.fill(2)
    G("s_waitcnt lgkmcnt(0)")
    for x in bias_lines(BIAS, STMP) + bias_lines(BIAS + 16, STMP + 16):
        G(x)
    G.fill(2)

    S = G.side.append
    if isQ:
        S("v_lshl_add_u32 %s, %s, 10, %s" % (vP2r[0], h, t4))
        S("s_lshl_b32 %s, %s, 9" % (sTc, sCW))
        S("v_add_u32 %s, %s, %s" % (vP2r[0], sTc, vP2r[0]))
        S("v_add_u32 %s, 0x10000, %s" % (vP2r[1], vP2r[0]))
    else:
        S("s_lshl_b32 %s, %s, 1" % (sTc, sCW))
        S("s_add_u32 %s, %s, %s" % (sTc, sTc, sTb))
        S("s_lshl_b32 %s, %s, 8" % (sTc, sTc))
        S("v_add_u32 %s, %s, %s" % (vP2r[0], sTc, t0))
        S("v_add_u32 %s, 0x10000, %s" % (vP2r[1], vP2r[0]))
        S("s_add_u32 %s, %s, 1" % (sTc, sTb))
        S("s_lshl_b32 %s, %s, 8" % (sTc, sTc))
        S("v_add_u32 %s, %s, %s" % (vP2r[2], sTc, t0))
        S("v_add_u32 %s, 0x10000, %s" % (vP2r[3], vP2r[2]))
    S("v_lshl_add_u32 %s, %s, 8, %s" % (t0, h, t4))
    S("v_add_u32 %s, %s, %s" % (vW2r[0], sM0w, t0))
    S("v_add_u32 %s, 0x10000, %s" % (vW2r[1], vW2r[0]))
    S("v_add_u32 %s, 0x20000, %s" % (vW2r[2], vW2r[0]))
    if isQ:
        S("v_bfe_u32 %s, %s, 2, 3" % (t0, vL))
        S("s_lshl_b32 %s, %s, 4" % (sTc, sW))
        S("v_add_u32 %s, %s, %s" % (t0, sTc, t0))
        S("v_mul_u32_u24 %s, %d, %s" % (vWp2[0], pitchB, t0))
        S("v_lshl_add_u32 %s, %s, 6, %s" % (t4, h, t3))
        S("s_lshl_b32 %s, %s, 7" % (sTc, sP))
        S("v_add3_u32 %s, %s, %s, %s" % (vWp2[0], vWp2[0], t4, sTc))
        S("v_add_u32 %s, %d, %s" % (vWp2[1], 8 * pitchB, vWp2[0]))
    else:
        S("v_mul_u32_u24 %s, %d, %s" % (vWp2[0], pitchB, t2))
        S("v_lshl_add_u32 %s, %s, 6, %s" % (t4, t1, t3))
        S("v_add3_u32 %s, %s, %s, %s" % (vWp2[0], vWp2[0], t4, sBO))
        for i in range(1, 4):
            S("v_add_u32 %s, %d, %s" % (vWp2[i], 4 * i * pitchB, vWp2[0]))
    S("v_bfe_u32 %s, %s, 2, 3" % (t0, vL))
    S("v_lshl_add_u32 %s, %s, 6, %s" % (t4, h, t3))
    S("v_lshl_add_u32 %s, %s, 10, %s" % (t0, t0, t4))
    S("s_lshl_b32 %s, %s, 7" % (sTc, sCT))
    S("v_add_u32 %s, %s, %s" % (vW2s[0], sTc, t0))
    S("v_add_u32 %s, 0x2000, %s" % (vW2s[1], vW2s[0]))
    S("s_lshr_b32 %s, %s, 2" % (sTc, sRB))
    S("s_mul_i32 %s, %s, %d" % (sTc, sTc, A_GRP))
    S("s_and_b32 %s, %s, 3" % (sBH, sRB))
    S("s_lshl_b32 %s, %s, 2" % (sBH, sBH))
    S("s_add_u32 %s, %s, %s" % (sBH, sBH, sW))
    S("s_lshl_b32 %s, %s, 10" % (sBH, sBH))
    S("s_add_u32 %s, %s, %s" % (sTc, sTc, sBH))
    S("s_add_u32 %s, %s, 0x%x" % (sTc, sTc, A_OFF))
    S("v_add_u32 %s, %s, %s" % (vSt[0], sTc, vL16))
    S("v_xor_b32 %s, 0x400, %s" % (vSt[1], vSt[0]))
    S("s_lshr_b32 %s, %s, 3" % (sTc, sR2))
    S("s_mul_i32 %s, %s, %d" % (sTc, sTc, A_GRP))
    S("s_and_b32 %s, %s, 7" % (sBH, sR2))
    S("s_lshl_b32 %s, %s, 11" % (sBH, sBH))
    S("s_add_u32 %s, %s, %s" % (sTc, sTc, sBH))
    S("s_add_u32 %s, %s, 0x%x" % (sTc, sTc, A_OFF))
    S("v_add_u32 %s, %s, %s" % (vA, sTc, vL16))
    S("s_mul_i32 %s, %s, %d" % (sBH, sW, 28 * UNIT))
    S("s_lshl_b32 %s, %s, 17" % (sBO, sW))
    S(lambda: G.ev.add("setup"))
    S("s_add_u32 %s, %s, 0x%x" % (sPollH, sPollH, WS_G))
    S("v_cmp_eq_u32 vcc, 63, %s" % vL)
    S("v_mov_b32 %s, %s" % (t0, sPollH))
    S("v_mov_b32 %s, 0x7fffff00" % t4)
    S("v_cndmask_b32 %s, %s, %s, vcc" % (vGoff, t4, t0))
    S("s_lshl_b32 %s, %s, 1" % (sTc, sRB))
    S("s_add_u32 %s, %s, %s" % (sCntGq, sTc, sRW))
    S("s_lshl_b32 %s, %s, 2" % (sCntSig, sCntGq))
    S("s_lshr_b32 %s, %s, 2" % (sPoll, sCG))
    S("s_add_u32 %s, %s, %s" % (sCntSig, sCntSig, sPoll))
    S("s_lshr_b32 %s, %s, 3" % (sPoll, sCG))
    S("s_add_u32 %s, %s, %s" % (sCntGsig, sTc, sPoll))
    S("s_lshl_b32 %s, %s, 1" % (sCntKV, sP))
    S("s_add_u32 %s, %s, %s" % (sCntKV, sCntKV, sCW))
    S("s_lshl_b32 %s, %s, 2" % (sCntH, sR2))
    S("s_add_u32 %s, %s, %s" % (sCntH, sCntH, sW))
    S("s_mov_b32 %s, %s" % (sCntG, sR2))
    for s, b in ((sCntSig, 0), (sCntKV, 128), (sCntGsig, 144), (sCntH, 0), (sCntG, 144), (sCntGq, 144)):
        S("s_lshl_b32 %s, %s, 8" % (s, s))
        S("s_add_u32 %s, %s, 0x%x" % (s, s, WS_CNT + b * 256))
    S(lambda: G.waitvm("g"))
    GU = TMP + 12
    XU = TMP + 20
    for i in range(4):
        S("v_lshlrev_b32 v%d, 16, v%d" % (GU + 2 * i, GW + i))
        S("v_and_b32 v%d, %s, v%d" % (GU + 2 * i + 1, vMaskHi, GW + i))
    for r, GX in enumerate((GX0, GX1)):
        for i in range(4):
            S("v_lshlrev_b32 v%d, 16, v%d" % (XU + 2 * i, GX + i))
            S("v_and_b32 v%d, %s, v%d" % (XU + 2 * i + 1, vMaskHi, GX + i))
        for i in range(8):
            S("v_mul_f32 v%d, v%d, v%d" % (XU + i, XU + i, GU + i))
        for i in range(4):
            S("v_cvt_pk_bf16_f32 v%d, v%d, v%d" % (GX + i, XU + 2 * i, XU + 2 * i + 1))
        for i in range(4):
            S("v_lshlrev_b32 v%d, 16, v%d" % (XU + 2 * i, GX + i))
            S("v_and_b32 v%d, %s, v%d" % (XU + 2 * i + 1, vMaskHi, GX + i))
        for i in range(4):
            S("v_add_f32 v%d, v%d, v%d" % (XU + i, XU + i, XU + 4 + i))
        S("v_add_f32 v%d, v%d, v%d" % (XU, XU, XU + 2))
        S("v_add_f32 v%d, v%d, v%d" % (XU + 1, XU + 1, XU + 3))
        S("v_add_f32 v%d, v%d, v%d" % (vGv + r, XU, XU + 1))
    for mod in ("row_shr:1 row_mask:0xf", "row_shr:2 row_mask:0xf", "row_shr:4 row_mask:0xf", "row_shr:8 row_mask:0xf",
                "row_bcast:15 row_mask:0xa", "row_bcast:31 row_mask:0xc"):
        S(("@skip", 1))
        for r in range(2):
            S("v_add_f32_dpp v%d, v%d, v%d %s bank_mask:0xf" % (vGv + r, vGv + r, vGv + r, mod))
    S("v_cvt_pk_bf16_f32 v%d, v%d, v%d" % (XU, vGv, vGv + 1))
    S("v_lshlrev_b32 v%d, 16, v%d" % (vGv, XU))
    S("v_and_b32 v%d, %s, v%d" % (vGv + 1, vMaskHi, XU))
    for r in range(2):
        S("v_mul_f32 v%d, 0xbfb8aa3b, v%d" % (vGv + r, vGv + r))
    for r in range(2):
        S("v_exp_f32 v%d, v%d" % (vGv + r, vGv + r))
    for r in range(2):
        S("v_add_f32 v%d, 1.0, v%d" % (vGv + r, vGv + r))
    for r in range(2):
        S("v_rcp_f32 v%d, v%d" % (vGv + r, vGv + r))
    S(("@skip", 1))
    S("v_cvt_pk_bf16_f32 v%d, v%d, v%d" % (XU, vGv, vGv + 1))
    S("v_lshlrev_b32 v%d, 16, v%d" % (vGv, XU))
    S("v_and_b32 v%d, %s, v%d" % (vGv + 1, vMaskHi, XU))

    if isQ:
        p2unit = [0, 0, 4, 4, 1, 1, 5, 5]
        for c in range(8):
            ev = "B%d" % (8 - CFG["dist"] + c // 4)
            for i in range(2):
                pre = chunk_pre(c, pitchB, False) if i == 0 else []
                G.push(pre + ["s_lshr_b32 m0, %s, 1" % sM0w, "s_add_u32 m0, m0, %d" % (p2unit[c] * UNIT + (c & 1) * 8192 + i * 1024)],
                       "buffer_load_dwordx4 %s, %s, %s offen lds" % (vWp2[i], srdB, sWs), ("c2", c), ev)
        ulist = [(8, None), (2, "B7"), (6, "B7"), (3, "B8"), (7, "B8"), (0, "C2"), (4, "C3"), (1, "C4"), (5, "C5")]
    else:
        p2unit = [0, 4, 1, 5, 2, 6, 3, 7]
        for c in range(8):
            ev = "B%d" % min(8, 8 - CFG["dist"] + c // 2)
            for i in range(4):
                pre = chunk_pre(c, pitchB, False) if i == 0 else []
                G.push(pre + ["s_add_u32 m0, %s, %d" % (sM0w, p2unit[c] * UNIT + i * 1024)],
                       "buffer_load_dwordx4 %s, %s, %s offen lds" % (vWp2[i], srdB, sWs), ("c2", c), ev)
        ulist = [(8, None)] + [(p2unit[c], "C%d" % (c + 2)) for c in range(8)]

    steps = [("h", u) for u in list(range(8)) + list(range(20, 28)) + list(range(8, 20))] + [("o", i) for i in range(8)]

    def push_w2(s, ev):
        k = (s % 18) // 2
        kind, u = steps[s]
        for j4 in range(2):
            pre = ["s_add_u32 %s, %s, %d" % (sWs, sBH if kind == "h" else sBO, u * UNIT)] if j4 == 0 else []
            G.push(pre + ["s_add_u32 m0, %s, %d" % (sM0w, ulist[k][0] * UNIT + (s & 1) * 2048 + j4 * 1024)],
                   "buffer_load_dwordx4 %s, %s, %s offen lds" % (vW2s[j4], SRD_W2 if kind == "h" else SRD_WO, sWs), ("w2", s), ev)
    for s in range(18):
        push_w2(s, ulist[s // 2][1])

    def reads1(g):
        c, t = g >> 2, g & 3
        fb = FR + (g % 3) * 8
        out = []
        for R in range(2):
            out.append(("ds_read_b128 %s, %s offset:%d" % (ar((g * 2 + R) * 4, 4), vXr[R][t], (c % 4) * UNIT), ("r1", g)))
        for tl in range(2):
            for j4 in range(2):
                out.append(("ds_read_b64_tr_b16 %s, %s offset:%d" % (vr(fb + tl * 4 + j4 * 2, 2), vWr, (c % 4) * UNIT + t * 4096 + j4 * 1024 + tl * 512), ("r1", g)))
        return out

    LAG2 = 4 if isQ else 2
    NB2 = 6 if isQ else 3
    FS2 = 4 if isQ else 8

    def reads2(g):
        c, t = g >> 2, g & 3
        fb = FR2 + ((g + LAG2) % NB2) * FS2
        u = p2unit[c]
        hi = 1 if u >= 4 else 0
        out = []
        if isQ:
            for j4 in range(2):
                out.append(("ds_read_b64_tr_b16 %s, %s offset:%d" % (vr(fb + j4 * 2, 2), vP2r[hi], (u % 4) * UNIT + (c & 1) * 8192 + t * 2048 + j4 * 256), ("r2", g)))
        else:
            for tl in range(2):
                for j4 in range(2):
                    out.append(("ds_read_b64_tr_b16 %s, %s offset:%d" % (vr(fb + tl * 4 + j4 * 2, 2), vP2r[tl * 2 + hi], (u % 4) * UNIT + t * 4096 + j4 * 1024), ("r2", g)))
        return out

    per = 8 if isQ else 4
    FR2 = FR
    G.fill(CFG.get("burst", 4))
    G.stamp(1)
    G.need(("c1", 0))
    G.barrier("B0")
    G.stamp(2)
    for g in range(2):
        for x in reads1(g):
            G(*x)
    for g in range(32):
        if (g + 2) % 4 == 0:
            c = (g + 2) // 4
            G.fstamp(1, 2 * c - 2)
            if c < 8:
                G.need(("c1", c))
            else:
                G.need(*[("c2", cc) for cc in range(per // 4)])
            G.waitlg(("r1", g + 1))
            G.barrier("B%d" % c)
            if c == 5:
                assert "setup" in G.ev
            G.fstamp(1, 2 * c - 1)
        if g + 2 < 32:
            rd = reads1(g + 2)
        else:
            rd = []
            for gg in range((g - 30) * LAG2 // 2, (g - 29) * LAG2 // 2):
                rd += reads2(gg)
        G.waitlg(("r1", g))
        fb = FR + (g % 3) * 8
        n = 0
        for tl in range(2):
            for R in range(2):
                d = vr(ACC + (tl * 2 + R) * 16, 16)
                x = ar((g * 2 + R) * 4, 4)
                wv = vr(fb + tl * 4, 4)
                cin = d if g > 0 else (vr(BIAS + tl * 16, 16) if isQ else "0")
                if isQ:
                    G("v_mfma_f32_32x32x16_bf16 %s, %s, %s, %s" % (d, wv, x, cin))
                else:
                    G("v_mfma_f32_32x32x16_bf16 %s, %s, %s, %s" % (d, x, wv, cin))
                for y in rd[2 * n:2 * n + 2]:
                    G(*y)
                G.gap(CFG["side1"], CFG["rate1"] / 100.0)
                n += 1
    G.flush_side()
    G.ev.add("C0")
    G.stamp(3)
    G.init_issue()

    def relu2_store(base, voff, soff, tag):
        out = []
        for i in range(16):
            out.append("v_max_f32 v%d, 0, v%d" % (base + i, base + i))
        for i in range(8):
            out.append("v_pk_mul_f32 %s, %s, %s" % (vr(base + 2 * i, 2), vr(base + 2 * i, 2), vr(base + 2 * i, 2)))
        for i in range(8):
            out.append("v_cvt_pk_bf16_f32 v%d, v%d, v%d" % (base + i, base + 2 * i, base + 2 * i + 1))
        st = [("buffer_store_dwordx4 %s, %s, %s, %s offen sc1" % (vr(base, 4), voff, SRD_WS, soff), tag),
              "s_add_u32 %s, %s, %d" % (sTb, soff, UNIT),
              ("buffer_store_dwordx4 %s, %s, %s, %s offen sc1" % (vr(base + 4, 4), voff, SRD_WS, sTb), tag)]
        return out, st

    cL2E, cEPS = "v252", "v251"

    def phi_pack(base, tmp):
        out = []
        if CFG["pk"]:
            for i in range(8):
                out.append("v_pk_mul_f32 %s, %s, v[252:253] op_sel_hi:[1,0]" % (vr(tmp + 2 * i, 2), vr(base + 2 * i, 2)))
        else:
            for i in range(16):
                out.append("v_mul_f32 v%d, %s, v%d" % (tmp + i, cL2E, base + i))
        for i in range(16):
            out.append("v_exp_f32_e64 v%d, v%d clamp" % (tmp + i, tmp + i))
            out.append("v_max_f32 v%d, %s, v%d" % (base + i, cEPS, base + i))
        if CFG["pk"]:
            for i in range(8):
                out.append("v_pk_add_f32 %s, %s, %s" % (vr(base + 2 * i, 2), vr(base + 2 * i, 2), vr(tmp + 2 * i, 2)))
        else:
            for i in range(16):
                out.append("v_add_f32 v%d, v%d, v%d" % (base + i, base + i, tmp + i))
        for i in range(8):
            out.append("v_cvt_pk_bf16_f32 v%d, v%d, v%d" % (base + i, base + 2 * i, base + 2 * i + 1))
        return out

    gstore = ("buffer_store_dwordx2 %s, %s, %s, 0 offen sc1" % (vr(vGv, 2), vGoff, SRD_WS), "pub1")

    def pub1_signal():
        G.signal(sCntSig if isQ else sCntKV, 1)
        G.signal(sCntGsig, 1)
        G.fstamp(2, 1)

    S("v_mov_b32 %s, 0x3fb8aa3b" % cL2E)
    S("v_mov_b32 %s, 0x358637bd" % cEPS)
    if isQ:
        sts = [gstore]
        for tl in range(2):
            for R in range(2):
                o, st = relu2_store(ACC + (tl * 2 + R) * 16, vSt[R], sUA if tl == 0 else sUB, "pub1")
                G.side += o
                sts += st
        G.side += sts
        S(lambda: G.fstamp(2, 0))
        S(lambda: G.signal_when("pub1", pub1_signal, CFG["sigQ"]))
    else:
        ONES = TMP + 32
        KD, ZD = TMP, TMP + 16
        for R in range(2):
            G.side += phi_pack(ACC + R * 16, TMP)
        for R in range(2):
            b = ACC + 32 + R * 16
            for i in range(8):
                S("v_cvt_pk_bf16_f32 v%d, v%d, v%d" % (b + i, b + 2 * i, b + 2 * i + 1))
        for i in range(4):
            S("v_mov_b32 v%d, 0x3f803f80" % (ONES + i))
        a0, a1, a2, a3 = "v244", "v245", "v246", "v247"
        S("v_and_b32 %s, 16, %s" % (a0, vL))
        S("v_cmp_eq_u32 vcc, 0, %s" % a0)
        n = 0
        for R in range(2):
            for kk in range(2):
                pk = vr(ACC + R * 16 + kk * 4, 4)
                vv = vr(ACC + 32 + R * 16 + kk * 4, 4)
                S("v_mfma_f32_32x32x16_bf16 %s, %s, %s, %s" % (vr(KD, 16), pk, vv, vr(KD, 16) if n else "0"))
                n += 1
        n = 0
        for R in range(2):
            for kk in range(2):
                pk = vr(ACC + R * 16 + kk * 4, 4)
                S("v_mfma_f32_32x32x16_bf16 %s, %s, %s, %s" % (vr(ZD, 16), vr(ONES, 4), pk, vr(ZD, 16) if n else "0"))
                n += 1
        S("s_lshl_b32 %s, %s, 10" % (sTc, sW))
        S("s_add_u32 %s, %s, %d" % (sTc, sTc, MISC))
        S("v_add_u32 %s, %s, %s" % (a0, sTc, vL16))
        S("v_xor_b32 %s, 0x800, %s" % (a1, a0))
        S("s_lshl_b32 %s, %s, 8" % (sTc, sW))
        S("s_add_u32 %s, %s, %d" % (sTc, sTc, MISC + 4096))
        S("v_lshl_add_u32 %s, %s, 2, %s" % (a2, vL, sTc))
        S("v_xor_b32 %s, 0x200, %s" % (a3, a2))
        for i in range(8):
            S("v_cndmask_b32 v%d, v%d, v%d, vcc" % (KD + i, KD + 8 + i, KD + i))

        def swp():
            G("s_cmp_eq_u32 %s, 0" % sRW)
            G("s_cbranch_scc1 LK_noswap")
            for i in range(4):
                G("v_swap_b32 v%d, v%d" % (KD + i, KD + 4 + i), "cond")
            G("LK_noswap:")
        S(swp)
        S(("ds_write_b128 %s, %s" % (a0, vr(KD + 4, 4)), "kx"))
        S(("ds_write_b32 %s, v%d" % (a2, ZD), "kx"))
        S("s_lshl_b32 %s, %s, 1" % (sTc, sP))
        S("s_add_u32 %s, %s, %s" % (sTc, sTc, sCW))
        S("s_lshl_b32 %s, %s, 4" % (sTc, sTc))
        S("s_add_u32 %s, %s, %s" % (sTc, sTc, sRB))
        S("s_lshl_b32 %s, %s, 1" % (sTb, sTc))
        S("s_add_u32 %s, %s, %s" % (sTb, sTb, sRW))
        S("s_lshl_b32 %s, %s, 10" % (sTb, sTb))
        S("s_add_u32 %s, %s, 0x%x" % (sTb, sTb, WS_KVP))
        S("s_lshl_b32 %s, %s, 7" % (sTc, sTc))
        S("s_add_u32 %s, %s, 0x%x" % (sTc, sTc, WS_Z))

        def xbar():
            G.waitlg("kx")
            G("s_barrier")
        S(xbar)
        S(("ds_read_b128 %s, %s" % (vr(KD + 4, 4), a1), "kr"))
        S(("ds_read_b32 v%d, %s" % (ZD + 1, a3), "kr"))
        S(("@skip", 3))
        S(lambda: G.waitlg("kr"))
        for i in range(4):
            S("v_add_f32 v%d, v%d, v%d" % (KD + i, KD + i, KD + 4 + i))
        S("v_add_f32 v%d, v%d, v%d" % (ZD, ZD, ZD + 1))
        S(("buffer_store_dwordx4 %s, %s, %s, %s offen sc1" % (vr(KD, 4), vL16, SRD_WS, sTb), "pub1"))
        S(("buffer_store_dword v%d, %s, %s, %s offen sc1" % (ZD, vS4, SRD_WS, sTc), "pub1"))
        S(gstore)
        S(lambda: G.fstamp(2, 0))
        S(lambda: G.signal_when("pub1", pub1_signal, CFG["sigK"]))
    if not CFG["ovl"]:
        G.flush_side()
    G.stamp(4)

    for g in range(32):
        if g == 3:
            G.init_gate()
        if g == 29:
            G.poll_issue(sPollH, sCntH)
            if isQ:
                G.poll_issue(sPollG, sCntGq)
                G.poll_issue(sPoll, sCntKV)
        if (g + LAG2) % per == 0:
            i = (g + LAG2) // per
            if i * per < 32:
                G.need(*[("c2", c) for c in range(i * per // 4, (i + 1) * per // 4)])
            G.barrier("C%d" % i)
        rd = reads2(g + LAG2) if g + LAG2 < 32 else []
        G.waitlg(("r2", g))
        fb = FR2 + ((g + LAG2) % NB2) * FS2
        jobs = [(0, 0), (0, 1)] if isQ else [(0, 0), (0, 1), (1, 0)]
        for n, (tl, R) in enumerate(jobs):
            d = vr(ACC2 + n * 16, 16)
            cin = d if g > 0 else ("0" if isQ else vr(BIAS + tl * 16, 16))
            G("v_mfma_f32_32x32x16_bf16 %s, %s, %s, %s" % (d, vr(fb + tl * 4, 4), ar((g * 2 + R) * 4, 4), cin))
            k0 = n * len(rd) // len(jobs) if isQ else 2 * n
            k1 = (n + 1) * len(rd) // len(jobs) if isQ else 2 * n + 2
            for y in rd[k0:k1]:
                G(*y)
            G.gap(CFG["side2Q" if isQ else "side2K"], CFG["rate2"] / 100.0)
    G.barrier("C%d" % (32 // per + 1))
    G.fstamp(2, 2)
    G.stamp(6)

    def w2reads(s, dst):
        k = (s % 18) // 2
        u = ulist[k][0]
        out = []
        for T in range(2):
            for j4 in range(2):
                out.append(("ds_read_b64_tr_b16 %s, %s offset:%d" % (dst(T * 4 + j4 * 2), vW2r[u // 4], (u % 4) * UNIT + (s & 1) * 2048 + j4 * 1024 + T * 512), ("wr", s)))
        return out

    ndrained = [0]

    def drain():
        k = ndrained[0]
        if k > 9:
            return
        ndrained[0] += 1
        if k < 9:
            G.need(("w2", 2 * k), ("w2", 2 * k + 1))
            for s in (2 * k, 2 * k + 1):
                for x in w2reads(s, lambda o, s=s: ar(s * 8 + o, 2)):
                    G(*x)
        if k > 0:
            G.waitlg(("wr", 2 * k - 1))
            G.ev.add("D%d" % (k - 1))

    def pub2_signal():
        G.signal(sCntSig, 2)
        G.fstamp(2, 9)

    NRING = 28
    RING = 144
    AL = [(s, R) for s in range(26) for R in range(2)] + [(26, 0), (27, 0), (26, 1), (27, 1)] + \
         [(s, 0) for s in range(28, 36)] + [(s, 1) for s in range(28, 36)]
    GO = TMP + 40
    GR = TMP + 16
    B2 = TMP + 20
    vRW = [TMP + i for i in range(8)]
    vRD = [TMP + 8 + i for i in range(2)]
    vO = TMP + 12
    vGr = TMP + 13
    vB2 = TMP + 14

    def hook_a(i):
        def f():
            if i == 0:
                G.fstamp(2, 7)
                G.gate(sPollH, sCntH, 0, 4)
                G.fstamp(2, 8)
            if i == 24:
                G.poll_issue(sPollH, sCntH)
                G.poll_issue(sPollG, sCntG)
            if i == 48:
                G.poll_issue(sPollH, sCntH)
            if i == 32:
                G.fstamp(2, 10)
                G.gate(sPollG, sCntG, 0, 32)
                G.gate(sPollH, sCntH, 8, 4, pending=False)
                G.fstamp(2, 11)
                assert "raddr" in G.ev
                G("s_lshl_b32 %s, %s, 8" % (sXs, sR2))
                G("s_add_u32 %s, %s, 0x%x" % (sXs, sXs, WS_G))
                G("buffer_load_dword v%d, %s, %s, %s offen sc1" % (GO, vS4, SRD_WS, sXs), "go")
                G("buffer_load_dword v%d, %s, %s, %s offen offset:128 sc1" % (GO + 2, vS4, SRD_WS, sXs), "go")
                G("buffer_load_dword v%d, v%d, %s, %s offen sc1" % (GR, vGr, SRD_WS, sXs), "go")
                G("buffer_load_dword v%d, v%d, %s, %s offen offset:128 sc1" % (GR + 1, vGr, SRD_WS, sXs), "go")
                G("global_load_dwordx4 %s, v%d, s[38:39]" % (vr(B2, 4), vB2), "go")
            if i == 56:
                G.fstamp(2, 12)
                G.gate(sPollH, sCntH, 16, 4)
                G.fstamp(2, 13)
        return f

    def push_a(i):
        s, R = AL[i]
        kind, u = steps[s]
        G.push(["s_add_u32 %s, %s, %d" % (sTa, sBH if kind == "h" else sBO, (u if kind == "h" else 112 + u) * UNIT)] if (i == 0 or AL[i - 1][0] != s) else [],
               "buffer_load_dwordx4 %s, %s, %s, %s offen offset:%d sc1" % (ar(RING + (i % NRING) * 4, 4), vA, SRD_WS, sTa, R * 1024),
               ("a", i), None if i < NRING else "M%d" % (i - NRING), hook_a(i))

    r2e = CFG["r2_earlyQ" if isQ else "r2_early"]
    s2 = 18
    for _ in range(2 * r2e):
        push_w2(s2, "D%d" % ((s2 - 18) // 2))
        s2 += 1
    for i in range(0, len(AL), 2):
        push_a(i)
        push_a(i + 1)
        if s2 < 36:
            push_w2(s2, "D%d" % ((s2 - 18) // 2))
            s2 += 1

    EV = CFG["ev"]

    def mix(L, ndr):
        marks = {(j + 1) * len(L) // (ndr + 1) for j in range(ndr)} if ndr else set()
        for i, x in enumerate(L):
            if i in marks:
                drain()
                G.fill(1)
            G.emit_item(x)
            if i % EV == EV - 1:
                G.fill(1)

    G.flush_side()
    if not isQ:
        L, sts = [], []
        for n, (R, so) in enumerate(((0, sUA), (1, sUA), (0, sUB))):
            o, st = relu2_store(ACC2 + n * 16, vSt[R], so, "pub2")
            L += o
            sts += st
        drain()
        mix(L, 4)
        if G.psig:
            G.waitvm("pub1")
        for x in sts:
            G.emit_item(x)
        G.signal_when("pub2", pub2_signal, CFG["sig2"])
        G.fstamp(2, 3)
    else:
        L = []
        for R in range(2):
            L += phi_pack(ACC2 + R * 16, TMP)
        GQ = TMP + 40
        PK = ACC
        ZL = TMP
        L.append("v_lshlrev_b32 %s, 2, %s" % (t4, vL))
        L.append("s_lshl_b32 %s, %s, 11" % (sTc, sW))
        L.append("s_add_u32 %s, %s, %d" % (sTc, sTc, MISC))
        L.append("v_add_u32 %s, %s, %s" % (t0, sTc, vL16))
        L.append("v_xor_b32 %s, 0x1000, %s" % (t1, t0))
        L.append("s_lshl_b32 %s, %s, 8" % (sTc, sW))
        L.append("s_add_u32 %s, %s, %d" % (sTc, sTc, MISC + 8192))
        L.append("v_add_u32 %s, %s, %s" % (t2, sTc, t4))
        L.append("v_and_b32 %s, 16, %s" % (t3, vL))
        L.append("v_cmp_eq_u32 vcc, 0, %s" % t3)
        L.append("v_xor_b32 %s, 16, %s" % (t3, t3))
        L.append("v_lshrrev_b32 v245, 5, %s" % vL)
        L.append("v_lshl_add_u32 %s, v245, 2, %s" % (t3, t3))
        L.append("s_lshl_b32 %s, %s, 8" % (sTc, sCW))
        L.append("s_add_u32 %s, %s, %d" % (sTc, sTc, MISC + 8192))
        L.append("v_lshl_add_u32 %s, %s, 2, %s" % (t3, t3, sTc))
        L.append("s_lshl_b32 %s, %s, 1" % (sTb, sP))
        L.append("s_add_u32 %s, %s, %s" % (sTb, sTb, sCW))
        L.append("s_lshl_b32 %s, %s, 15" % (sTc, sTb))
        L.append("s_add_u32 %s, %s, %d" % (sUA, sTc, 112 * UNIT))
        L.append("s_add_u32 %s, %s, %d" % (sUB, sTc, 113 * UNIT))
        L.append("s_lshl_b32 %s, %s, 1" % (sTc, sTb))
        L.append("s_add_u32 %s, %s, %s" % (sTc, sTc, sRW))
        L.append("s_lshl_b32 %s, %s, 14" % (sTb, sTc))
        L.append("s_add_u32 %s, %s, 0x%x" % (sTb, sTb, WS_KVP))
        L.append("s_lshl_b32 %s, %s, 10" % (sTc, sTc))
        L.append("s_add_u32 %s, %s, 0x%x" % (sTc, sTc, WS_Z))
        L.append("s_lshl_b32 s33, %s, 2" % sRB)
        L.append("s_add_u32 s33, s33, %s" % sW)
        L.append("s_lshl_b32 s33, s33, 7")
        L.append("s_add_u32 s33, s33, 0x%x" % WS_G)
        L.append("s_xor_b32 s34, s33, 0x80")
        drain()
        mix(L, 5)
        if G.psig:
            G.waitvm("pub1")
        G.fill(CFG["qpre"])
        G.fstamp(2, 3)
        G.gate(sPollG, sCntGq, 0, 32)
        G.gate(sPoll, sCntKV, 0, 32, pending=False)
        G.fstamp(2, 4)
        for i in range(16):
            if i and i % 4 == 0:
                G("s_add_u32 %s, %s, 4096" % (sTb, sTb))
            G("buffer_load_dwordx4 %s, %s, %s, %s offen offset:%d sc1" % (vr(PK + i * 4, 4), vL16, SRD_WS, sTb, (i % 4) * 1024), ("kvp", i // 8))
        for i in range(4):
            G("buffer_load_dword v%d, %s, %s, %s offen offset:%d sc1" % (ZL + i, t4, SRD_WS, sTc, i * 256), "kvz")
        G("buffer_load_dword v%d, %s, %s, s33 offen sc1" % (GQ, vS4, SRD_WS), "kvz")
        G("buffer_load_dword v%d, %s, %s, s34 offen sc1" % (GQ + 1, vS4, SRD_WS), "kvz")
        drain()
        drain()
        G.fill(4)
        G.waitvm(("kvp", 0))
        for st in (16, 8):
            for i in range(0, st, 2):
                G("v_pk_add_f32 %s, %s, %s" % (vr(PK + i, 2), vr(PK + i, 2), vr(PK + st + i, 2)))
        G.fill(2)
        G.waitvm(("kvp", 1))
        for st in (16, 8):
            for i in range(0, st, 2):
                G("v_pk_add_f32 %s, %s, %s" % (vr(PK + 32 + i, 2), vr(PK + 32 + i, 2), vr(PK + 32 + st + i, 2)))
        G.waitvm("kvz")
        G.fstamp(2, 5)
        G("v_add_f32 v%d, v%d, v%d" % (ZL, ZL, ZL + 1))
        G("v_add_f32 v%d, v%d, v%d" % (ZL + 2, ZL + 2, ZL + 3))
        G("v_add_f32 v%d, v%d, v%d" % (ZL, ZL, ZL + 2))
        G("v_mov_b32 v%d, v%d" % (ZL + 1, ZL))
        for i in range(0, 8, 2):
            G("v_pk_add_f32 %s, %s, %s" % (vr(PK + i, 2), vr(PK + i, 2), vr(PK + 32 + i, 2)))
        G("v_permlane32_swap_b32 v%d, v%d" % (ZL, ZL + 1))
        G("ds_write_b128 %s, %s" % (t0, vr(PK, 4)), "qx")
        G("v_add_f32 v%d, v%d, v%d" % (ZL, ZL, ZL + 1))
        G("ds_write_b128 %s, %s offset:1024" % (t0, vr(PK + 4, 4)), "qx")
        G("ds_write_b32 %s, v%d" % (t2, ZL), "qx")
        G.fill(2)
        G.waitlg("qx")
        G.barrier("BQ")
        G("ds_read_b128 %s, %s" % (vr(PK + 8, 4), t1), "qr")
        G("ds_read_b128 %s, %s offset:1024" % (vr(PK + 12, 4), t1), "qr")
        G("ds_read_b128 %s, %s" % (vr(PK + 16, 4), t3), "qr")
        G("ds_read_b128 %s, %s offset:32" % (vr(PK + 20, 4), t3), "qr")
        G("ds_read_b128 %s, %s offset:512" % (vr(PK + 24, 4), t3), "qr")
        G("ds_read_b128 %s, %s offset:544" % (vr(PK + 28, 4), t3), "qr")
        G.fill(2)
        G.waitlg("qr")
        for i in range(0, 8, 2):
            G("v_pk_add_f32 %s, %s, %s" % (vr(PK + i, 2), vr(PK + i, 2), vr(PK + 8 + i, 2)))
            G("v_pk_add_f32 %s, %s, %s" % (vr(PK + 16 + i, 2), vr(PK + 16 + i, 2), vr(PK + 24 + i, 2)))
        for i in range(4):
            G("v_cvt_pk_bf16_f32 v%d, v%d, v%d" % (PK + i, PK + 2 * i, PK + 2 * i + 1))
            G("v_cvt_pk_bf16_f32 v%d, v%d, v%d" % (PK + 16 + i, PK + 16 + 2 * i, PK + 16 + 2 * i + 1))
        A0, A1 = FR, FR + 4
        for i in range(4):
            G("v_cndmask_b32 v%d, v%d, v%d, vcc" % (A0 + i, PK + 16 + i, PK + i))
        for i in range(4):
            G("v_cndmask_b32 v%d, v%d, v%d, vcc" % (A1 + i, PK + i, PK + 16 + i))
        OD = BIAS
        for hd in range(2):
            for R in range(2):
                G("v_mfma_f32_32x32x16_bf16 %s, %s, %s, 0" % (vr(OD + (hd * 2 + R) * 16, 16), vr(A1 if hd else A0, 4), vr(ACC2 + R * 16 + hd * 4, 4)))
                G.fill(1)
        sts = []
        for hd in range(2):
            for R in range(2):
                b = OD + (hd * 2 + R) * 16
                num, den = (b + 8, b) if hd else (b, b + 8)
                G("v_add_f32 v%d, %s, v%d" % (den, cEPS, den))
                G("v_rcp_f32 v%d, v%d" % (den, den))
                G("v_mul_f32 v%d, v%d, v%d" % (den, den, GQ + R))
                for i in range(4):
                    G("v_pk_mul_f32 %s, %s, %s op_sel_hi:[1,0]" % (vr(num + 2 * i, 2), vr(num + 2 * i, 2), vr(den, 2)))
                for i in range(4):
                    G("v_cvt_pk_bf16_f32 v%d, v%d, v%d" % (ACC2 + 32 + (hd * 2 + R) * 4 + i, num + 2 * i, num + 2 * i + 1))
                G("buffer_store_dwordx4 %s, %s, %s, %s offen sc1" % (vr(ACC2 + 32 + (hd * 2 + R) * 4, 4), vSt[R], SRD_WS, sUB if hd else sUA), "pub2")
        G.signal_when("pub2", pub2_signal, CFG["sig2"])
        G.fstamp(2, 6)
    while ndrained[0] <= 9:
        drain()
        G.fill(2)

    AH = 2 * CFG["ahead"]
    assert AH + 2 <= NRING
    S = G.side.append
    S("v_and_b32 %s, 15, %s" % (t0, vL))
    S("v_lshrrev_b32 %s, 5, %s" % (t1, vL))
    S("v_xor_b32 %s, %s, %s" % (t1, t1, t0))
    S("v_lshlrev_b32 %s, 4, %s" % (t1, t1))
    S("v_lshl_add_u32 %s, %s, 8, %s" % (t1, t0, t1))
    S("v_bfe_u32 %s, %s, 4, 1" % (t0, vL))
    S("v_lshl_add_u32 %s, %s, 14, %s" % (t1, t0, t1))
    S("v_add_u32 v%d, %s, %s" % (vRW[0], sM0w, t1))
    S("v_lshrrev_b32 %s, 3, %s" % (t0, vL))
    S("v_and_b32 %s, 7, %s" % (t1, vL))
    S("s_lshl_b32 %s, %s, 5" % (sTc, sW))
    S("v_lshl_add_u32 v%d, %s, 2, %s" % (vGr, t0, sTc))
    S("s_lshl_b32 %s, %s, 7" % (sUB, sCT))
    S("v_lshl_add_u32 v%d, %s, 4, %s" % (vB2, t1, sUB))
    S(lambda: G.ev.add("raddr"))
    for i in range(1, 8):
        S("v_xor_b32 v%d, %d, v%d" % (vRW[i], i << 5, vRW[0]))
    S("s_lshl_b32 %s, %s, 3" % (sTc, sCW))
    S("v_add_u32 %s, %s, %s" % (t3, sTc, t0))
    S("v_lshlrev_b32 %s, 1, %s" % (t2, t1))
    S("v_xor_b32 %s, %s, %s" % (t2, t2, t3))
    S("v_lshlrev_b32 %s, 4, %s" % (t2, t2))
    S("v_lshl_add_u32 %s, %s, 8, %s" % (t2, t3, t2))
    S("s_lshl_b32 %s, %s, 14" % (sTc, sRW))
    S("v_add_u32 v%d, %s, %s" % (vRD[0], sTc, t2))
    S("v_xor_b32 v%d, 16, v%d" % (vRD[1], vRD[0]))
    S("v_lshlrev_b32 %s, 4, %s" % (t1, t1))
    S("v_lshl_add_u32 v%d, %s, 10, %s" % (vO, t0, t1))
    S("s_lshl_b32 %s, %s, 3" % (sUA, sR2))
    S("s_add_u32 %s, %s, %s" % (sUA, sUA, sW))
    S("s_lshl_b32 %s, %s, 13" % (sUA, sUA))
    S("s_add_u32 %s, %s, %s" % (sUA, sUA, sUB))
    S("s_add_u32 %s, %s, 0x8000" % (sUB, sUA))

    BG = BIAS

    def gprep():
        out = [lambda: G.waitvm("go")]
        for a, b, c in ((GO, GO + 2, GO + 1), (GR, GR + 1, GR + 2)):
            out.append("v_sub_f32 v%d, 1.0, v%d" % (a, a))
            out.append("v_sub_f32 v%d, 1.0, v%d" % (b, b))
            out.append("v_cvt_pk_bf16_f32 v%d, v%d, v%d" % (c, a, b))
            out.append("v_lshlrev_b32 v%d, 16, v%d" % (a, c))
            out.append("v_and_b32 v%d, %s, v%d" % (b, vMaskHi, c))
        for i in range(4):
            out.append("v_lshlrev_b32 v%d, 16, v%d" % (BG + 16 + 2 * i, B2 + i))
            out.append("v_and_b32 v%d, %s, v%d" % (BG + 16 + 2 * i + 1, vMaskHi, B2 + i))
        for R in range(2):
            for i in range(8):
                out.append("v_mul_f32 v%d, v%d, v%d" % (BG + R * 8 + i, GR + R, BG + 16 + i))
        return out

    def wfrag(s, T):
        if s < 18:
            return ar(s * 8 + T * 4, 4)
        if s >= 28:
            return ar((s - 28) * 8 + T * 4, 4)
        return vr(FR + (s % 3) * 8 + T * 4, 4)

    def jit(s):
        G.need(("w2", s))
        if s >= 28:
            return w2reads(s, lambda o: ar((s - 28) * 8 + o, 2))
        fb = FR + (s % 3) * 8
        return w2reads(s, lambda o: vr(fb + o, 2))

    def scale(R):
        out = []
        for T in range(2):
            b = ACC + (T * 2 + R) * 16
            for i in range(8):
                out.append("v_pk_mul_f32 %s, %s, %s op_sel_hi:[1,0]" % (vr(b + 2 * i, 2), vr(b + 2 * i, 2), vr(GO + 2 * R, 2)))
        return out

    def red_write(R):
        return [("ds_write_b128 v%d, %s offset:%d" % (vRW[T * 4 + m], vr(ACC + (T * 2 + R) * 16 + 4 * m, 4), R * 32768), ("rw", R))
                for T in range(2) for m in range(4)]

    RD = ACC2

    def red_read(R):
        return [("ds_read_b128 %s, v%d offset:%d" % (vr(RD + src * 8 + e * 4, 4), vRD[e], R * 32768 + src * 4096), ("rd", R, src // 2))
                for src in range(4) for e in range(2)]

    def red_fin(R):
        b = RD
        out = [lambda: G.waitlg(("rd", R, 0))]
        for i in range(0, 8, 2):
            out.append("v_pk_add_f32 %s, %s, %s" % (vr(b + i, 2), vr(b + i, 2), vr(b + 8 + i, 2)))
        for i in range(0, 8, 2):
            out.append("v_pk_add_f32 %s, %s, %s" % (vr(b + i, 2), vr(b + i, 2), vr(BG + R * 8 + i, 2)))
        out.append(lambda: G.waitlg(("rd", R, 1)))
        for i in range(0, 8, 2):
            out.append("v_pk_add_f32 %s, %s, %s" % (vr(b + 16 + i, 2), vr(b + 16 + i, 2), vr(b + 24 + i, 2)))
        for i in range(0, 8, 2):
            out.append("v_pk_add_f32 %s, %s, %s" % (vr(b + i, 2), vr(b + i, 2), vr(b + 16 + i, 2)))
        for i in range(4):
            out.append("v_cvt_pk_bf16_f32 v%d, v%d, v%d" % (b + 32 + 4 * R + i, b + 2 * i, b + 2 * i + 1))
        out.append(("buffer_store_dwordx4 %s, v%d, %s, %s offen%s" % (vr(b + 32 + 4 * R, 4), vO, SRD_OUT, sUB if R else sUA, ("", " sc1", " nt", " sc0 sc1")[CFG["outsc"]]), "out"))
        return out

    jit_at = {}
    for s in range(18, 28):
        jit_at.setdefault(2 * (s - 2), []).append(s)
    for s in range(28, 36):
        jit_at.setdefault(2 * (s - 9) + 1, []).append(s)
    G.flush_until(("a", min(AH, 8)))
    for i, (s, R) in enumerate(AL):
        rd = []
        for sj in jit_at.get(i, []):
            rd += jit(sj)
        if i == 36:
            G.side += gprep()
        if i == 54:
            G.flush_side()
            G.side += [("@skip", 2)] + scale(0)
        if i == 56:
            G.flush_side()
            G.side += [("@skip", 2)] + scale(1)
        if i == 64:
            G.flush_side()

            def rbar():
                G.waitlg(("rw", 0))
                G("s_barrier")
            G.side += [("@skip", 2)] + red_write(0) + [("@skip", 2), rbar] + red_read(0) + [("@skip", 2)] + red_fin(0)
        G.need(("a", i))
        if s >= 18:
            G.waitlg(("wr", s))
        for T in range(2):
            d = vr(ACC + (T * 2 + R) * 16, 16)
            cin = d if s > 0 else "0"
            G("v_mfma_f32_32x32x16_bf16 %s, %s, %s, %s" % (d, wfrag(s, T), ar(RING + (i % NRING) * 4, 4), cin))
            for y in rd[2 * T:2 * T + 2]:
                G(*y)
            for _ in range(2):
                if any(x[2][0] == "a" and x[2][1] <= i + AH for x in G.q):
                    G.fill(1)
            G.gap(8 if i in (54, 55) else 4)
        G.ev.add("M%d" % i)
    assert not G.q and not G.psig
    G.fstamp(2, 14)
    G.flush_side()
    for x in red_write(1):
        G(*x)
    G.waitlg(("rw", 1))
    G("s_barrier")
    for x in red_read(1):
        G(*x)
    for x in red_fin(1):
        G.emit_item(x)
    if CFG["stamps"]:
        G.waitvm("out")
        G.fstamp(2, 15)
        G.stamp(15)
        G("v_writelane_b32 %s, %s, 16" % (vStamp, sTO))
        if CFG.get("fine", 0):
            for i in range(16):
                G("v_writelane_b32 %s, s%d, %d" % (vStamp, STMP + 2 * i, 48 + i))
        G("s_lshl_b32 %s, %s, 4" % (sTc, sRB))
        G("s_add_u32 %s, %s, %s" % (sTc, sTc, sCG))
        G("s_lshl_b32 %s, %s, 2" % (sTc, sTc))
        G("s_add_u32 %s, %s, %s" % (sTc, sTc, sW))
        G("s_lshl_b32 %s, %s, 8" % (sTc, sTc))
        G("s_add_u32 %s, %s, 0x%x" % (sTc, sTc, WS_DBG))
        G("v_lshlrev_b32 %s, 2, %s" % (t0, vL))
        G("buffer_store_dword %s, %s, %s, %s offen" % (vStamp, t0, SRD_WS, sTc))
    if CFG.get("pad0", 0):
        G("s_load_dword s100, s[40:41], 0x80")
        G("s_waitcnt lgkmcnt(0)")
    if CFG.get("padT", 0):
        l = G.lab("pt")
        G("%s:" % l)
        G("s_sleep 1")
        G("s_memrealtime s[64:65]")
        G("s_waitcnt lgkmcnt(0)")
        G("s_sub_u32 s64, s64, s100")
        G("s_cmp_lt_u32 s64, %d" % CFG["padT"])
        G("s_cbranch_scc1 %s" % l)
    if CFG.get("dbgt", 0):
        l = G.lab("dt")
        G("s_waitcnt vmcnt(0)")
        G("s_memrealtime s[64:65]")
        G("s_lshl_b32 %s, %s, 2" % (sTc, sR2))
        G("s_and_b32 %s, %s, 3" % (sTb, sR2))
        G("s_or_b32 %s, %s, %s" % (sTb, sTb, sCT))
        G("s_or_b32 %s, %s, %s" % (sTb, sTb, sW))
        G("s_cmp_lg_u32 %s, 0" % sTb)
        G("s_cbranch_scc1 %s" % l)
        G("s_waitcnt lgkmcnt(0)")
        G("v_mov_b32 v2, %s" % sR2)
        G("v_mov_b32 v3, s100")
        G("s_sub_u32 s64, s64, s100")
        G("v_mov_b32 v4, s64")
        G("global_store_dword v2, v3, s[40:41] offset:32")
        G("s_cmp_eq_u32 %s, 0" % sR2)
        G("s_cbranch_scc1 %s" % l)
        G("global_store_dword v2, v4, s[40:41]")
        G("%s:" % l)
    G("s_endpgm")
    return G


def main():
    hdr = open("cdna_kernels/%s.s.ref" % NAME).read().split("\n")
    head = []
    for line in hdr:
        if line.startswith("; @launch"):
            head.append("; @launch grid=(256,1,1) block=(256,1,1) lds=163840")
        elif line.startswith(";"):
            head.append(line)
        else:
            break
    P = prologue()
    body = []
    K = build(False)
    Q = build(True)
    def filt(l):
        if CFG.get("nomfma", 0):
            l = [x for x in l if x.kind != "mfma"]
        if CFG.get("noload", 0):
            l = [x for x in l if not (x.kind == "vmem" and x.op.startswith("buffer_load"))]
        if CFG.get("nostore", 0):
            l = [x for x in l if not (x.kind == "vmem" and x.tag in ("pub1", "pub2"))]
        return l
    kl = pad_hazards(filt(resolve(P.l + K.l)))
    ql = pad_hazards(filt(resolve(P.l + Q.l)))
    idx = [i for i, x in enumerate(ql) if x.text == "L_Q:"][0]
    ql = ql[idx:]
    s = "\n".join(head) + "\n"
    s += '.amdgcn_target "amdgcn-amd-amdhsa--gfx950"\n.text\n.globl %s_kernel\n.p2align 8\n.type %s_kernel,@function\n%s_kernel:\n' % (NAME, NAME, NAME)
    s += render(kl) + "\n.p2align 6\n" + render(ql) + "\nL_end:\n    s_endpgm\n"
    s += """.section .rodata,"a"
.p2align 6
.amdhsa_kernel %s_kernel
  .amdhsa_next_free_vgpr 512
  .amdhsa_next_free_sgpr 102
  .amdhsa_accum_offset 256
  .amdhsa_group_segment_fixed_size 0
  .amdhsa_kernarg_size 96
  .amdhsa_user_sgpr_count 2
  .amdhsa_user_sgpr_kernarg_segment_ptr 1
  .amdhsa_system_sgpr_workgroup_id_x 1
  .amdhsa_float_denorm_mode_32 3
  .amdhsa_float_denorm_mode_16_64 3
.end_amdhsa_kernel
""" % NAME
    open(sys.argv[1], "w").write(s)
    print("wrote", sys.argv[1], "instr K", len(kl), "Q", len(ql))


if __name__ == "__main__":
    main()
```
